```python
import torch

def _softmax(x, axis=-1):
    return torch.softmax(x, dim=axis)
def _gelu(x):
    return torch.nn.functional.gelu(x, approximate="tanh")
def _silu(x):
    return torch.nn.functional.silu(x)
def _sigmoid(x):
    return torch.sigmoid(x)
def _layernorm(x, axis=-1, eps=1e-5):
    m = x.mean(dim=axis, keepdim=True)
    v = x.var(dim=axis, keepdim=True, unbiased=False)
    return (x - m) / torch.sqrt(v + eps)
def _scatter_add(tgt, idx, src, axis=0):
    return tgt.clone().index_add_(axis, idx, src)
def _segment_sum(src, seg, n):
    out = torch.zeros((n,) + src.shape[1:], dtype=src.dtype)
    return out.index_add_(0, seg, src)
def _pad(x, pw):
    flat = tuple(v for pair in reversed(pw) for v in pair)
    return torch.nn.functional.pad(x, flat)

kernel_name = 'concat_heads__compressed_kv_cla__ssm_conv_s4__prompt'

def setup_inputs():

    _w = (lambda a: (lambda t: t.to(torch.bfloat16) if t.is_floating_point() else t)(torch.as_tensor(a)))
    def _A_setup():
        B, H, Sq, Sk, D, M = 1, 32, 2048, 2048, 128, 512
        Dc = 4 * D
        return {
            "x": _w((lambda *s: torch.randn(*s, dtype=torch.bfloat16) * 3.2)(B, Sq, M)),
            "c_kv": _w((lambda *s: torch.randn(*s, dtype=torch.bfloat16) * 0.1)(B, Sk, Dc)),
            "w_q": _w((lambda *s: torch.randn(*s, dtype=torch.bfloat16) * 6.4)(M, H, D) * (M ** -0.5)),
            "w_uk": _w((lambda *s: torch.randn(*s, dtype=torch.bfloat16) * 6.4)(Dc, H, D) * (Dc ** -0.5)),
            "w_uv": _w((lambda *s: torch.randn(*s, dtype=torch.bfloat16) * 0.1)(Dc, H, D) * (Dc ** -0.5)),
            "w_o": _w((lambda *s: torch.randn(*s, dtype=torch.bfloat16) * 0.1)(H, D, M) * ((H * D) ** -0.5)),
        }
    _A_in = _A_setup()

    def _B_setup():
        B, L, D, N = 1, 2048, 512, 128
        A_re = -(lambda _x: torch.exp(torch.as_tensor(_x)))((lambda *s: torch.randn(*s, dtype=torch.bfloat16) * 3.2)(D, N))
        A_im = torch.pi * (lambda *s: torch.randn(*s, dtype=torch.bfloat16) * 0.05)(D, N)
        B_re = (lambda *s: torch.randn(*s, dtype=torch.bfloat16) * 0.1)(D, N)
        B_im = (lambda *s: torch.randn(*s, dtype=torch.bfloat16) * 0.1)(D, N)
        C_re = (lambda *s: torch.randn(*s, dtype=torch.bfloat16) * 0.1)(D, N)
        C_im = (lambda *s: torch.randn(*s, dtype=torch.bfloat16) * 0.1)(D, N)
        log_dt = (lambda *s: torch.randn(*s, dtype=torch.bfloat16) * 0.05)(D) * 0.5 - 4.0
        Dskip = (lambda *s: torch.randn(*s, dtype=torch.bfloat16) * 0.05)(D)
        return {
            "u": _w((lambda *s: torch.randn(*s, dtype=torch.bfloat16) * 0.05)(B, L, D)),
            "A_re": _w(A_re),
            "A_im": _w(A_im),
            "B_re": _w(B_re),
            "B_im": _w(B_im),
            "C_re": _w(C_re),
            "C_im": _w(C_im),
            "log_dt": _w(log_dt),
            "Dskip": _w(Dskip),
        }
    _B_in = _B_setup()

    return {
        "A_x": _A_in["x"],
        "A_c_kv": _A_in["c_kv"],
        "A_w_q": _A_in["w_q"],
        "A_w_uk": _A_in["w_uk"],
        "A_w_uv": _A_in["w_uv"],
        "A_w_o": _A_in["w_o"],
        "B_u": _B_in["u"],
        "B_A_re": _B_in["A_re"],
        "B_A_im": _B_in["A_im"],
        "B_B_re": _B_in["B_re"],
        "B_B_im": _B_in["B_im"],
        "B_C_re": _B_in["C_re"],
        "B_C_im": _B_in["C_im"],
        "B_log_dt": _B_in["log_dt"],
        "B_Dskip": _B_in["Dskip"],
    }

def reference(A_x, A_c_kv, A_w_q, A_w_uk, A_w_uv, A_w_o, B_u, B_A_re, B_A_im, B_B_re, B_B_im, B_C_re, B_C_im, B_log_dt, B_Dskip):
    def _A_ref(x, c_kv, w_q, w_uk, w_uv, w_o):
        B, Sq, M = x.shape[0], x.shape[1], x.shape[2]
        Sk = c_kv.shape[1]
        H, D = w_q.shape[1], w_q.shape[2]
        q = torch.einsum("bqm,mhd->bhqd", x, w_q)
        k = torch.einsum("bkc,chd->bhkd", c_kv, w_uk)
        v = torch.einsum("bkc,chd->bhkd", c_kv, w_uv)
        scores = torch.einsum("bhqd,bhkd->bhqk", q, k) * (D ** -0.5)
        off = Sk - Sq
        qi = torch.arange(Sq)[:, None]
        kj = torch.arange(Sk)[None, :]
        cmask = kj <= (qi + off)
        scores = torch.where(cmask[None, None], scores, -1e9)
        p = _softmax(scores, axis=-1)
        ctx = torch.einsum("bhqk,bhkd->bhqd", p, v)
        return torch.einsum("bhqd,hdm->bqm", ctx, w_o)

    def _B_ref(u, A_re, A_im, B_re, B_im, C_re, C_im, log_dt, Dskip):
        Bsz, L, D = u.shape
        dt = torch.exp(log_dt)[:, None]
        A = A_re + 1j * A_im
        Bc = B_re + 1j * B_im
        Cc = C_re + 1j * C_im
        logdA = dt * A
        dB = dt * Bc
        l = (lambda x, dt: x.to(dt))(torch.arange(L), A_re.dtype)
        P = torch.exp(logdA[:, :, None] * l[None, None, :])
        K = torch.einsum("dn,dnl,dn->dl", Cc, P, dB).real
        L2 = 2 * L
        Kp = _pad(K, ((0, 0), (0, L)))
        up = (lambda x, *d: x.permute(*d))(u, 0, 2, 1)
        up = _pad(up, ((0, 0), (0, 0), (0, L)))
        Kf = (lambda x, axes=(-2,-1): torch.fft.rfft2(x.float(), dim=axes))(Kp[:, None, :], axes=(-2, -1))
        Uf = (lambda x, axes=(-2,-1): torch.fft.rfft2(x.float(), dim=axes))(up[:, :, None, :], axes=(-2, -1))
        Yf = Uf * Kf[None, :, :, :]
        y = (lambda x, s, axes=(-2,-1): torch.fft.irfft2(x, s=s, dim=axes).to(torch.bfloat16))(Yf, (1, L2), axes=(-2, -1))[:, :, 0, :L]
        y = (lambda x, *d: x.permute(*d))(y, 0, 2, 1) + u * Dskip[None, None, :]
        return y

    a = _A_ref(A_x, A_c_kv, A_w_q, A_w_uk, A_w_uv, A_w_o)
    b = _B_ref(B_u, B_A_re, B_A_im, B_B_re, B_B_im, B_C_re, B_C_im, B_log_dt, B_Dskip)
    return torch.concatenate([a, b], axis=-1)
```

```python
import re

TRANS = ("v_exp_f32", "v_log_f32", "v_rcp_f32", "v_rsq_f32", "v_sqrt_f32", "v_sin_f32", "v_cos_f32")
_REG = re.compile(r"^(-?)(?:abs\()?\|?([vsa])(?:(\d+)|\[(\d+):(\d+)\])\|?\)?$")


def regs_of(tok):
    tok = tok.strip()
    if tok in ("vcc",):
        return {"vcc"}
    if tok in ("vcc_lo", "vcc_hi"):
        return {"vcc"}
    if tok in ("exec", "exec_lo", "exec_hi"):
        return {"exec"}
    if tok == "m0":
        return {"m0"}
    m = _REG.match(tok)
    if not m:
        return set()
    k = m.group(2)
    if m.group(3) is not None:
        return {k + m.group(3)}
    return {k + str(i) for i in range(int(m.group(4)), int(m.group(5)) + 1)}


class Ins:
    __slots__ = ("text", "mn", "ops", "kind", "w", "r", "passes", "srcc", "srcab", "xdl", "wide_store_data")

    def __init__(self, text):
        self.text = text
        t = text.split(";")[0].strip()
        self.w = set(); self.r = set(); self.passes = 0; self.srcc = set(); self.srcab = set()
        self.xdl = False; self.wide_store_data = set()
        if not t or t.startswith("."):
            self.kind = "none"; self.mn = ""; self.ops = []
            return
        if t.endswith(":"):
            self.kind = "label"; self.mn = ""; self.ops = []
            return
        parts = t.split(None, 1)
        self.mn = mn = parts[0]
        rest = parts[1] if len(parts) > 1 else ""
        ops = [o.strip() for o in rest.split(",")] if rest else []
        mods = []
        if ops:
            last = ops[-1].split()
            ops[-1] = last[0] if last else ""
            mods = last[1:]
        self.ops = ops
        R = [regs_of(o) for o in ops]
        if mn.startswith("v_mfma"):
            self.kind = "mfma"
            self.w = R[0]; self.srcab = R[1] | R[2]; self.srcc = R[3]; self.r = self.srcab | self.srcc
            if "f32_32x32x2_f32" in mn: self.passes = 16
            elif "f32_16x16x4_f32" in mn: self.passes = 8
            elif "32x32x16" in mn: self.passes = 8; self.xdl = True
            elif "16x16x32" in mn: self.passes = 4; self.xdl = True
            else: raise ValueError("unknown mfma " + mn)
        elif mn.startswith("v_"):
            base = mn.replace("_e32", "").replace("_e64", "")
            self.kind = "trans" if base in TRANS else "valu"
            if base.startswith("v_permlane") and "swap" in base:
                self.w = R[0] | R[1]; self.r = R[0] | R[1]
            elif base.startswith("v_add_co") or base.startswith("v_sub_co") or base.startswith("v_addc_co"):
                self.w = R[0] | R[1]
                for x in R[2:]: self.r |= x
            else:
                self.w = R[0]
                for x in R[1:]: self.r |= x
                if base.startswith("v_fmac") or base.startswith("v_pk_fmac") or base.startswith("v_dot2c"):
                    self.r |= R[0]
                if base.startswith("v_cmpx"):
                    self.w |= {"exec"}
        elif mn.startswith("buffer_") or mn.startswith("global_"):
            self.kind = "vmem"
            if "load" in mn and "lds" not in mods and "lds" not in mn:
                self.w = R[0]
                for x in R[1:]: self.r |= x
            else:
                for x in R: self.r |= x
                if "lds" in mods or "lds" in mn:
                    self.r |= {"m0"}
                if "store" in mn and ("x3" in mn or "x4" in mn):
                    self.wide_store_data = R[0] if mn.startswith("buffer_") else R[1]
        elif mn.startswith("ds_"):
            self.kind = "ds"
            if mn.startswith("ds_read") or mn.startswith("ds_bpermute") or mn.startswith("ds_permute") or mn.startswith("ds_swizzle"):
                self.w = R[0]
                for x in R[1:]: self.r |= x
            else:
                for x in R: self.r |= x
        elif mn.startswith("s_"):
            if mn.startswith("s_cbranch") or mn == "s_branch" or mn.startswith("s_setpc"):
                self.kind = "branch"
            elif mn in ("s_nop", "s_waitcnt", "s_barrier", "s_setprio", "s_endpgm", "s_sleep"):
                self.kind = "other"
            elif mn.startswith("s_load") or mn.startswith("s_buffer_load"):
                self.kind = "smem"; self.w = R[0]
                for x in R[1:]: self.r |= x
            elif mn.startswith("s_cmp") or mn.startswith("s_bitcmp"):
                self.kind = "salu"
                for x in R: self.r |= x
            else:
                self.kind = "salu"; self.w = R[0]
                for x in R[1:]: self.r |= x
                if "saveexec" in mn: self.w |= {"exec"}
        else:
            raise ValueError("unknown instruction: " + text)

    def states(self):
        if self.kind in ("none", "label"):
            return 0
        if self.mn == "s_nop":
            return int(self.ops[0], 0) + 1
        return 1


def _isv(r): return r[0] in "va" and r != "vcc"
def _iss(r): return (r[0] == "s" or r == "vcc")


def hazard_pass(lines, verbose=False):
    out = []
    pos = 0
    ev = []
    ninserted = 0
    XD = {2: 5, 4: 8, 8: 12, 16: 20}
    XC = {2: 4, 4: 6, 8: 10, 16: 18}
    XW = {2: 1, 4: 3, 8: 7, 16: 15}
    SD = {2: 4, 4: 6, 8: 10, 16: 18}
    SC = {2: 2, 4: 4, 8: 8, 16: 16}

    def need(p, c):
        n = 0
        cv = c.kind in ("valu", "trans")
        if p.kind in ("valu", "trans"):
            pv = {r for r in p.w if _isv(r)}
            ps = {r for r in p.w if _iss(r)}
            if c.kind == "mfma" and pv & c.r: n = max(n, 2)
            if p.kind == "trans" and c.kind == "valu" and pv & c.r: n = max(n, 1)
            if cv and ps & c.r:
                n = max(n, 4 if c.mn.startswith("v_readlane") or c.mn.startswith("v_writelane") else 2)
            if c.kind == "vmem" and ps & c.r: n = max(n, 5)
            if c.kind in ("salu", "branch") and ps & (c.r | ({"vcc"} if "vcc" in c.mn else set())): n = max(n, 2)
            if cv and (c.mn.startswith("v_readfirstlane") or c.mn.startswith("v_readlane")) and pv & c.r: n = max(n, 1)
            if cv and c.mn.startswith("v_permlane") and pv & c.r: n = max(n, 2)
            if cv and "dpp" in c.text and pv & c.r: n = max(n, 2)
            if "exec" in p.w and c.kind == "mfma": n = max(n, 4)
        elif p.kind == "mfma":
            D = XD if p.xdl else SD
            if (cv and p.w & (c.r | c.w)) or (c.kind in ("vmem", "ds") and p.w & (c.r | c.w)):
                n = max(n, D[p.passes])
            if c.kind == "mfma":
                if p.w & c.srcab: n = max(n, D[p.passes])
                if p.w & c.srcc and not (p.w == c.srcc and p.passes == c.passes):
                    n = max(n, (XC if p.xdl else SC)[p.passes])
                if p.w & c.w and not (p.w == c.srcc and p.passes == c.passes):
                    n = max(n, (XC if p.xdl else SC)[p.passes])
            if p.xdl and cv and p.srcc & c.w: n = max(n, XW[p.passes])
        elif p.kind == "salu":
            if "m0" in p.w and c.kind == "vmem" and "m0" in c.r: n = max(n, 1)
        elif p.kind == "vmem":
            if p.wide_store_data:
                if cv and p.wide_store_data & c.w: n = max(n, 2)
                elif p.wide_store_data & c.w: n = max(n, 1)
        return n

    def worst(p):
        if p.kind in ("valu", "trans"):
            if any(_iss(r) for r in p.w): return 5
            return 2
        if p.kind == "mfma":
            return (XD if p.xdl else SD)[p.passes]
        if p.kind == "salu" and "m0" in p.w: return 1
        if p.kind == "vmem" and p.wide_store_data: return 2
        return 0

    for ln in lines:
        c = Ins(ln)
        if c.kind == "none":
            out.append(ln); continue
        req = 0
        for (pp, p) in ev:
            dist = pos - pp
            n = worst(p) if c.kind in ("label", "branch") else need(p, c)
            if c.kind == "branch": n = max(n - 1, need(p, c))
            if n - dist > req: req = n - dist
        while req > 0:
            k = min(req, 16)
            out.append("    s_nop %d" % (k - 1))
            pos += k; req -= k; ninserted += 1
        out.append(ln)
        pos += c.states()
        if c.kind in ("valu", "trans", "mfma", "salu", "vmem"):
            ev.append((pos, c))
        ev = [(pp, p) for (pp, p) in ev if pos - pp < 24]
    if verbose:
        print("hazard pass inserted", ninserted, "s_nop")
    return out


class Asm:
    def __init__(self):
        self.lines = []
        self.vm = []
        self.lg = []

    def __call__(self, s, *a):
        if a: s = s % a
        for l in s.split("\n"):
            l = l.strip()
            if not l: continue
            self.lines.append(l if l.endswith(":") or l.startswith(".") else "    " + l)

    def label(self, name):
        self.lines.append(name + ":")

    def vmem(self, s, tag=None):
        self(s); self.vm.append(tag)

    def lds(self, s, tag=None):
        self(s); self.lg.append(tag)

    def wait_vm(self, tag):
        idx = [i for i, t in enumerate(self.vm) if t == tag]
        if not idx: return
        n = len(self.vm) - 1 - idx[-1]
        assert n <= 63
        self("s_waitcnt vmcnt(%d)" % n)
        self.vm = self.vm[idx[-1] + 1:]

    def wait_lg(self, tag):
        idx = [i for i, t in enumerate(self.lg) if t == tag]
        if not idx: return
        n = len(self.lg) - 1 - idx[-1]
        n = min(n, 15)
        self("s_waitcnt lgkmcnt(%d)" % n)
        self.lg = self.lg[len(self.lg) - n:] if n else []

    def wait_vm_all(self):
        self("s_waitcnt vmcnt(0)"); self.vm = []

    def wait_lg_all(self):
        self("s_waitcnt lgkmcnt(0)"); self.lg = []


def v(i, n=1):
    return "v%d" % i if n == 1 else "v[%d:%d]" % (i, i + n - 1)


def s(i, n=1):
    return "s%d" % i if n == 1 else "s[%d:%d]" % (i, i + n - 1)
```

```python
from asmlib import *
import math, struct

WS_Q = 0
WS_K = 16 << 20
WS_V = 32 << 20
WS_C = 48 << 20


def srd(a, d, lo, hi, nbytes):
    a("s_mov_b32 s%d, s%d" % (d, lo))
    a("s_and_b32 s%d, s%d, 0xffff" % (d + 1, hi))
    a("s_mov_b32 s%d, 0x%x" % (d + 2, nbytes))
    a("s_mov_b32 s%d, 0x20000" % (d + 3))


def f32bits(x):
    return struct.unpack("<I", struct.pack("<f", x))[0]


K1_LDS = 65536 + 8 * 12288


def gen_k1(name, nox=False, notr=False, nodma=False, nost=False, stf="sc1", stamp=False, pref=False):
    a = Asm()
    XF, ACC, WF = 0, 128, 192
    VXD, VW, VT, VL16, VXR, VTMP = 224, 225, 226, 228, 229, 236
    NS = 4; D = 6; NR = 8
    XBASE = 65536
    a.label(name)
    a("s_cmp_ge_u32 s2, 256")
    a("s_cbranch_scc1 L_k1_end")
    a("s_load_dwordx4 s[32:35], s[0:1], 0")
    a("s_load_dwordx4 s[36:39], s[0:1], 16")
    a("s_load_dwordx2 s[40:41], s[0:1], 32")
    a("s_load_dwordx2 s[42:43], s[0:1], 136")
    a("v_lshrrev_b32 v%d, 6, v0" % VTMP)
    a("v_readfirstlane_b32 s3, v%d" % VTMP)
    a("v_and_b32 v%d, 63, v0" % VTMP)
    a("s_and_b32 s4, s2, 7")
    a("s_lshl_b32 s4, s4, 2")
    a("s_lshr_b32 s5, s2, 3")
    a("s_and_b32 s5, s5, 3")
    a("s_add_u32 s4, s4, s5")
    a("s_lshr_b32 s5, s2, 5")
    L = VTMP; T1 = VTMP + 1; T2 = VTMP + 2; T3 = VTMP + 3
    a("v_lshrrev_b32 v%d, 3, v%d" % (T1, L))
    a("v_and_b32 v%d, 7, v%d" % (T2, L))
    a("v_bfe_u32 v%d, v%d, 4, 1" % (T3, L))
    a("v_lshlrev_b32 v%d, 2, v%d" % (T3, T3))
    a("v_xor_b32 v%d, v%d, v%d" % (T3, T2, T3))
    a("v_lshlrev_b32 v%d, 4, v%d" % (T3, T3))
    a("v_lshl_add_u32 v%d, v%d, 13, v%d" % (VW, T1, T3))
    a("v_lshrrev_b32 v%d, 1, v%d" % (T3, T1))
    a("v_xor_b32 v%d, v%d, v%d" % (T3, T2, T3))
    a("v_lshlrev_b32 v%d, 4, v%d" % (T3, T3))
    a("v_lshl_add_u32 v%d, v%d, 10, v%d" % (VXD, T1, T3))
    a("v_xor_b32 v%d, 64, v%d" % (VTMP + 4, VXD))
    VXD2 = VTMP + 4
    a("v_lshlrev_b32 v%d, 4, v%d" % (VL16, L))
    a("v_and_b32 v%d, 31, v%d" % (T1, L))
    a("v_bfe_u32 v%d, v%d, 1, 3" % (T2, L))
    a("v_lshrrev_b32 v%d, 5, v%d" % (T3, L))
    a("v_xor_b32 v%d, v%d, v%d" % (T2, T2, T3))
    a("v_lshlrev_b32 v%d, 4, v%d" % (T2, T2))
    a("v_lshl_add_u32 v%d, v%d, 7, v%d" % (T1, T1, T2))
    a("s_mul_i32 s50, s3, 12288")
    a("s_add_u32 s50, s50, %d" % XBASE)
    for k in range(4):
        a("v_xor_b32 v%d, %d, v%d" % (T2, 32 * k, T1))
        a("v_add_u32 v%d, s50, v%d" % (VXR + k, T2))
    a("v_lshrrev_b32 v%d, 5, v%d" % (T1, L))
    a("v_lshlrev_b32 v%d, 10, v%d" % (T1, T1))
    a("v_bfe_u32 v%d, v%d, 2, 2" % (T2, L))
    a("v_lshl_add_u32 v%d, v%d, 7, v%d" % (T1, T2, T1))
    a("v_bfe_u32 v%d, v%d, 4, 1" % (T3, L))
    a("v_lshl_add_u32 v%d, v%d, 5, v%d" % (T1, T3, T1))
    a("v_and_b32 v%d, 3, v%d" % (T3, L))
    a("v_lshl_add_u32 v%d, v%d, 3, v%d" % (T1, T3, T1))
    a("v_bfe_u32 v%d, v%d, 3, 1" % (T2, L))
    for nt in range(2):
        a("v_xor_b32 v%d, %d, v%d" % (T3, nt, T2))
        a("v_lshl_add_u32 v%d, v%d, 6, v%d" % (VT + nt, T3, T1))
    a("s_waitcnt lgkmcnt(0)")
    srd(a, 8, 32, 33, 2048 * 512 * 2)
    srd(a, 12, 34, 35, 2048 * 512 * 2)
    srd(a, 16, 36, 37, 512 * 4096 * 2)
    srd(a, 20, 38, 39, 512 * 4096 * 2)
    srd(a, 24, 40, 41, 512 * 4096 * 2)
    srd(a, 28, 42, 43, 64 << 20)
    a("s_lshl_b32 s6, s5, 3")
    a("s_add_u32 s6, s6, s3")
    a("s_mov_b32 s47, s6")
    a("s_lshl_b32 s6, s6, 15")
    a("s_lshl_b32 s7, s3, 17")
    a("s_lshl_b32 s46, s4, 8")
    a("s_add_u32 s7, s7, s46")
    a("s_lshl_b32 s44, s3, 11")
    a("s_lshl_b32 s45, s4, 6")
    a("s_add_u32 s45, s45, s47")
    a("s_lshl_b32 s45, s45, 13")
    a("s_lshr_b32 s48, s47, 1")
    a("s_lshl_b32 s46, s4, 5")
    a("s_add_u32 s48, s48, s46")
    a("s_lshl_b32 s48, s48, 14")
    a("s_and_b32 s46, s3, 1")
    a("s_lshl_b32 s46, s46, 11")
    a("s_add_u32 s48, s48, s46")
    a("s_add_u32 s48, s48, 0x%x" % WS_V)
    a("s_mov_b32 s49, 0x%08x" % f32bits((128 ** -0.5) * math.log2(math.e)))

    def dostamp(i):
        if not stamp: return
        a("s_memtime s[60:61]")
        a("s_waitcnt lgkmcnt(0)")
        a.lg = []
        a("v_writelane_b32 v250, s60, %d" % i)
    def dma(gc):
        if nodma: return
        hp, c = gc // 4, gc % 4
        mat, nh = hp // 2, hp % 2
        slot = gc % NS
        for i in range(2):
            a("s_add_u32 s46, s7, 0x%x" % ((128 * c + 8 * i) * 8192 + nh * 128))
            a("s_add_u32 m0, s44, 0x%x" % (slot * 16384 + i * 1024))
            a.vmem("buffer_load_dwordx4 v%d, s[%d:%d], s46 offen lds" % (VW, 16 + 4 * mat, 19 + 4 * mat), ("w", gc))

    def xdma(n):
        if nox: return
        which, i = n // 8, n % 8
        slot = n % 3
        for ip in range(4):
            a("s_add_u32 s46, s6, 0x%x" % (ip * 8192 + i * 128))
            a("s_add_u32 m0, s50, 0x%x" % (slot * 4096 + ip * 1024))
            a.vmem("buffer_load_dwordx4 v%d, s[%d:%d], s46 offen lds" % (VXD2 if ip & 1 else VXD, 8 + 4 * which, 11 + 4 * which), ("x", n))

    def xread(n):
        if nox: return
        i = n % 8
        slot = n % 3
        a.wait_vm(("x", n))
        for k in range(4):
            a.lds("ds_read_b128 %s, v%d offset:%d" % (v(XF + 4 * (4 * i + k), 4), VXR + k, slot * 4096), ("xr", n))
        if n + 3 < 16:
            a.wait_lg(("xr", n))
            xdma(n + 3)

    NF = 24 * 16

    def fread(f):
        if notr: return
        gc, r = f // 16, f % 16
        nt, ks = r // 8, r % 8
        slot = gc % NS
        reg = WF + 4 * (f % NR)
        for e in range(2):
            a.lds("ds_read_b64_tr_b16 %s, v%d offset:%d" % (v(reg + 2 * e, 2), VT + nt, slot * 16384 + (16 * ks + 4 * e) * 128), ("f", f))

    def pack(hp, nt2):
        mat = hp // 2
        acc = ACC + 32 * (hp % 2) + 16 * nt2
        if mat == 0:
            for i in range(16):
                a("v_mul_f32 v%d, s49, v%d" % (acc + i, acc + i))
        for g in range(2):
            for i in range(4):
                a("v_cvt_pk_bf16_f32 v%d, v%d, v%d" % (acc + 8 * g + i, acc + 8 * g + 2 * i, acc + 8 * g + 2 * i + 1))

    def store(hp, nt2, g):
        if nost: return
        mat, nh = hp // 2, hp % 2
        nt = 2 * nh + nt2
        pk = ACC + 32 * (hp % 2) + 16 * nt2 + 8 * g
        if mat < 2:
            ks = 2 * nt + g
            base = (WS_Q if mat == 0 else WS_K) + (ks // 4) * 4096
            a("s_add_u32 s46, s45, 0x%x" % base)
            a.vmem("buffer_store_dwordx4 %s, v%d, s[28:31], s46 offen offset:%d %s" % (v(pk, 4), VL16, (ks % 4) * 1024, stf), "st")
        else:
            a("s_add_u32 s46, s48, 0x%x" % (nt * 4096))
            a.vmem("buffer_store_dwordx4 %s, v%d, s[28:31], s46 offen offset:%d %s" % (v(pk, 4), VL16, g * 1024, stf), "st")

    dostamp(0)
    dma(0)
    xdma(0); xdma(1)
    dma(1)
    xdma(2)
    dma(2)
    if pref:
        a("v_lshrrev_b32 v%d, 3, v%d" % (T1, L))
        a("v_and_b32 v%d, 7, v%d" % (T2, L))
        a("v_lshlrev_b32 v%d, 7, v%d" % (T2, T2))
        a("v_lshl_add_u32 v%d, v%d, 10, v%d" % (T1, T1, T2))
        a("v_lshrrev_b32 v%d, 1, v%d" % (T2, L))
        a("v_and_b32 v%d, 1, v%d" % (T3, L))
        a("v_lshlrev_b32 v%d, 7, v%d" % (T3, T3))
        a("v_lshl_add_u32 v%d, v%d, 13, v%d" % (T2, T2, T3))
        for which in range(2):
            for i in range(4):
                a("s_add_u32 s46, s6, 0x%x" % (i * 8192))
                a.vmem("buffer_load_dword v252, v%d, s[%d:%d], s46 offen" % (T1, 8 + 4 * which, 11 + 4 * which), "pf")
        a("s_lshl_b32 s51, s3, 19")
        a("s_lshl_b32 s46, s4, 8")
        a("s_add_u32 s51, s51, s46")
        for mat in range(3):
            for j in range(2):
                a("s_add_u32 s46, s51, 0x%x" % (j * 32 * 8192))
                a.vmem("buffer_load_dword v252, v%d, s[%d:%d], s46 offen" % (T2, 16 + 4 * mat, 19 + 4 * mat), "pf")
    xsched = {-1: [0, 1], 0: [2, 3], 1: [4, 5], 2: [6, 7], 4: [8, 9], 5: [10], 6: [11, 12], 7: [13], 8: [14, 15]}
    for n in xsched[-1]: xread(n)
    pend_pack = []
    pend_store = []
    for gc in range(24):
        hp, c = gc // 4, gc % 4
        mat = hp // 2
        if gc == 0:
            a.wait_vm(("w", 0))
        if gc + 1 < 24:
            a.wait_vm(("w", gc + 1))
        a("s_barrier")
        dostamp(gc + 1)
        if gc + 3 < 24:
            dma(gc + 3)
        if pend_store and c > 0:
            for _ in range(2 if c == 3 else 1):
                store(*pend_store.pop(0))
        if gc == 0:
            for f in range(D): fread(f)
        for nt in range(2):
            for ks in range(8):
                f = gc * 16 + nt * 8 + ks
                if f + D < NF: fread(f + D)
                a.wait_lg(("f", f))
                if nt == 0 and ks % 4 == 0:
                    a.wait_lg(("xr", (8 if mat > 0 else 0) + 2 * c + ks // 4))
                acc = v(ACC + 32 * (hp % 2) + 16 * nt, 16)
                wf = v(WF + 4 * (f % NR), 4)
                xf = v(XF + 4 * (8 * c + ks), 4)
                cc = "0" if (c == 0 and ks == 0) else acc
                if mat < 2:
                    a("v_mfma_f32_32x32x16_bf16 %s, %s, %s, %s" % (acc, wf, xf, cc))
                else:
                    a("v_mfma_f32_32x32x16_bf16 %s, %s, %s, %s" % (acc, xf, wf, cc))
                if ks == 3 and pend_pack:
                    p = pend_pack.pop(0)
                    pack(*p)
                    pend_store += [(p[0], p[1], 0), (p[0], p[1], 1)]
            if c == 3:
                pend_pack.append((hp, nt))
        for n in xsched.get(gc, []): xread(n)
    while pend_pack:
        p = pend_pack.pop(0)
        pack(*p)
        pend_store += [(p[0], p[1], 0), (p[0], p[1], 1)]
    while pend_store:
        store(*pend_store.pop(0))
    if stamp:
        dostamp(25)
        a("s_waitcnt vmcnt(0)")
        dostamp(26)
        a("s_lshl_b32 s46, s2, 3")
        a("s_add_u32 s46, s46, s3")
        a("s_lshl_b32 s46, s46, 8")
        a("s_add_u32 s46, s46, 0x%x" % (60 << 20))
        a("v_lshrrev_b32 v251, 2, v%d" % VL16)
        a("buffer_store_dword v250, v251, s[28:31], s46 offen")
    a.label("L_k1_end")
    a("s_endpgm")
    return a.lines
```

```python
from asmlib import *
from k1 import srd, f32bits, WS_Q, WS_K, WS_V, WS_C
import math

K2_LDS = 163840


def gen_k2(name, stf="sc1"):
    a = Asm()
    Q, O, S, P, NEGM, SAVE, FR, E = 0, 32, 96, 128, 144, 160, 192, 224
    KA, VA, L16, MU, LS = 232, 233, 234, 235, 236
    SA, SB = 238, 240
    THR, T1, T2, NINF, SCR, T3, T4, T5, STA = 242, 243, 244, 245, 246, 247, 248, 249, 250
    NR, D = 8, 6
    a.label(name)
    a("s_cmp_ge_u32 s2, 256")
    a("s_cbranch_scc1 L_k2_end")
    a("s_load_dwordx2 s[42:43], s[0:1], 136")
    a("v_lshrrev_b32 v%d, 6, v0" % T1)
    a("v_readfirstlane_b32 s3, v%d" % T1)
    a("v_and_b32 v%d, 63, v0" % T1)
    a("v_lshlrev_b32 v%d, 4, v%d" % (L16, T1))
    a("s_and_b32 s4, s2, 7")
    a("s_lshl_b32 s4, s4, 2")
    a("s_lshr_b32 s5, s2, 3")
    a("s_and_b32 s5, s5, 3")
    a("s_add_u32 s4, s4, s5")
    a("s_lshr_b32 s5, s2, 5")
    a("s_lshr_b32 s6, s3, 2")
    a("s_and_b32 s7, s3, 3")
    a("s_sub_u32 s12, 16, s5")
    a("v_and_b32 v%d, 31, v%d" % (THR, T1))
    a("v_lshrrev_b32 v%d, 5, v%d" % (T2, T1))
    a("v_lshlrev_b32 v%d, 2, v%d" % (T2, T2))
    a("v_sub_u32 v%d, v%d, v%d" % (THR, THR, T2))
    a("s_lshl_b32 s23, s7, 5")
    a("s_lshl_b32 s24, s6, 6")
    a("s_sub_u32 s23, s23, s24")
    a("v_add_u32 v%d, s23, v%d" % (THR, THR))
    a("v_mov_b32 v%d, 0xff800000" % NINF)
    a("s_lshl_b32 s23, s6, 16")
    a("v_add_u32 v%d, s23, v%d" % (KA, L16))
    a("v_add_u32 v%d, 0x8000, v%d" % (VA, KA))
    a("v_xor_b32 v%d, 0x4000, v%d" % (VA, VA))
    a("s_lshl_b32 s24, s7, 12")
    a("s_add_u32 s20, s23, s24")
    a("s_add_u32 s21, s20, 0x8000")
    a("s_lshl_b32 s24, s7, 13")
    a("s_add_u32 s24, s24, 0x20000")
    a("v_add_u32 v%d, s24, v%d" % (SCR, L16))
    a("s_lshl_b32 s18, s4, 19")
    a("s_lshl_b32 s23, s6, 14")
    a("s_add_u32 s18, s18, s23")
    a("s_lshl_b32 s23, s7, 12")
    a("s_add_u32 s18, s18, s23")
    a("s_add_u32 s19, s18, 0x%x" % WS_V)
    a("s_add_u32 s18, s18, 0x%x" % WS_K)
    a("s_mov_b32 s26, 0x58800000")
    a("s_waitcnt lgkmcnt(0)")
    srd(a, 8, 42, 43, 64 << 20)

    def dma_tile(seqreg_expr_add, is_v):
        a("s_add_u32 s23, s14, %d" % seqreg_expr_add)
        a("s_min_u32 s23, s23, 16")
        a("s_and_b32 s36, s23, 1")
        a("s_lshl_b32 s36, s36, 14")
        a("s_add_u32 m0, s36, s%d" % (21 if is_v else 20))
        a("s_cmp_ge_u32 s23, s12")
        a("s_cselect_b32 s24, s12, 0")
        a("s_sub_u32 s23, s23, s24")
        a("s_lshl_b32 s23, s23, 15")
        a("s_add_u32 s23, s23, s%d" % (19 if is_v else 18))
        for i in range(4):
            a("buffer_load_dwordx4 v%d, s[8:11], s23 offen offset:%d lds" % (L16, 1024 * i))

    def qload():
        a("s_lshl_b32 s23, s4, 6")
        a("s_lshl_b32 s24, s17, 2")
        a("s_add_u32 s23, s23, s24")
        a("s_add_u32 s23, s23, s7")
        a("s_lshl_b32 s23, s23, 13")
        a("s_add_u32 s24, s23, 4096")
        for ks in range(8):
            a("buffer_load_dwordx4 %s, v%d, s[8:11], s%d offen offset:%d" % (v(Q + 4 * ks, 4), L16, 23 if ks < 4 else 24, (ks % 4) * 1024))

    a("s_mov_b32 s14, 0")
    a("s_sub_u32 s17, 15, s5")
    a("s_mov_b32 s25, 0")
    qload()

    def dma_tile2(add, is_v):
        a("s_add_u32 s23, s14, %d" % add)
        a("s_and_b32 s36, s23, 1")
        a("s_lshl_b32 s36, s36, 14")
        a("s_add_u32 m0, s36, s%d" % (21 if is_v else 20))
        a("s_min_u32 s23, s23, 16")
        a("s_cmp_ge_u32 s23, s12")
        a("s_cselect_b32 s24, s12, 0")
        a("s_sub_u32 s23, s23, s24")
        a("s_lshl_b32 s23, s23, 15")
        a("s_add_u32 s23, s23, s%d" % (19 if is_v else 18))
        for i in range(4):
            a("buffer_load_dwordx4 v%d, s[8:11], s23 offen offset:%d lds" % (L16, 1024 * i))

    dma_tile2(0, False)
    dma_tile2(1, False)
    dma_tile2(0, True)
    a("s_waitcnt vmcnt(8)")

    fcnt = [0]

    def kread(i):
        a.lds("ds_read_b128 %s, v%d offset:%d" % (v(FR + 4 * (fcnt[0] % NR), 4), KA, i * 1024), ("f", fcnt[0])); fcnt[0] += 1

    def vread(i):
        a.lds("ds_read_b128 %s, v%d offset:%d" % (v(FR + 4 * (fcnt[0] % NR), 4), VA, i * 1024), ("f", fcnt[0])); fcnt[0] += 1

    def mphase(qk, pv, prefetched):
        seq = []
        if qk: seq += [("k", i) for i in range(16)]
        if pv: seq += [("v", i) for i in range(16)]
        fcnt[0] = prefetched
        if prefetched:
            a.lg = [("f", i) for i in range(prefetched)]
        issued = prefetched
        def issue():
            nonlocal issued
            if issued < len(seq):
                kind, i = seq[issued]
                (kread if kind == "k" else vread)(i)
                issued += 1
        while issued < min(D, len(seq)): issue()
        for n, (kind, i) in enumerate(seq):
            issue()
            a.wait_lg(("f", n))
            fr = v(FR + 4 * (n % NR), 4)
            if kind == "k":
                st, ks = i // 8, i % 8
                acc = v(S + 16 * st, 16)
                cc = v(NEGM, 16) if ks == 0 else acc
                a("v_mfma_f32_32x32x16_bf16 %s, %s, %s, %s" % (acc, fr, v(Q + 4 * ks, 4), cc))
            else:
                dt, k16 = i // 4, i % 4
                acc = v(O + 16 * dt, 16)
                a("v_mfma_f32_32x32x16_bf16 %s, %s, %s, %s" % (acc, fr, v(P + 4 * k16, 4), acc))

    def kprefetch():
        fcnt[0] = 0
        a.lg = []
        for i in range(D): kread(i)

    a.label("L_k2_qblock")
    a("s_add_u32 s16, s17, 1")
    a("s_mov_b32 s15, 0")
    for i in range(64): a("v_mov_b32 v%d, 0" % (O + i))
    for i in range(16): a("v_mov_b32 v%d, 0" % (NEGM + i))
    a("v_mov_b32 v%d, 0" % MU)
    a("v_mov_b32 v%d, 0" % LS)
    a("s_barrier")
    kprefetch()
    a("s_cmp_eq_u32 s6, 0")
    a("s_cbranch_scc1 L_k2_m0")
    a("s_barrier")
    a.label("L_k2_m0")
    mphase(True, False, D)
    a("s_branch L_k2_mdone")
    a.label("L_k2_loop")
    a("s_barrier")
    mphase(True, True, D)
    a.label("L_k2_mdone")
    a("v_xor_b32 v%d, 0x4000, v%d" % (KA, KA))
    a("v_xor_b32 v%d, 0x4000, v%d" % (VA, VA))
    a("s_waitcnt vmcnt(4)")
    a("s_barrier")
    dma_tile2(2, False)
    dma_tile2(1, True)
    a("s_add_u32 s15, s15, 1")
    a("s_cmp_lg_u32 s15, s16")
    a("s_cbranch_scc1 L_k2_nomask")
    for r0 in range(0, 32, 4):
        for q in range(4):
            r = r0 + q
            st, jj, ii = r // 16, (r % 16) // 4, r % 4
            e = 32 * st + 8 * jj + ii
            a("v_cmp_lt_i32_e64 s[%d:%d], v%d, %d" % (28 + 2 * q, 29 + 2 * q, THR, e))
        for q in range(4):
            r = r0 + q
            a("v_cndmask_b32_e64 v%d, v%d, v%d, s[%d:%d]" % (S + r, S + r, NINF, 28 + 2 * q, 29 + 2 * q))
    a.label("L_k2_nomask")
    a("s_mov_b32 s22, 0xf149f2ca")
    a("s_cmp_eq_u32 s15, 1")
    a("s_cbranch_scc1 L_k2_rare")
    a.label("L_k2_exp")
    for p in range(16):
        e = E + 2 * (p % 4)
        a("v_exp_f32 v%d, v%d" % (e, S + 2 * p))
        a("v_exp_f32 v%d, v%d" % (e + 1, S + 2 * p + 1))
        if p >= 1:
            pe = E + 2 * ((p - 1) % 4)
            a("v_cvt_pk_bf16_f32 v%d, v%d, v%d" % (P + p - 1, pe, pe + 1))
            if p - 1 < 2:
                a("v_add_f32 v%d, v%d, v%d" % (SA + (p - 1), pe, pe + 1))
            else:
                a("v_add_f32 v%d, v%d, v%d" % (SA, SA, pe))
                a("v_add_f32 v%d, v%d, v%d" % (SA + 1, SA + 1, pe + 1))
    pe = E + 2 * (15 % 4)
    a("v_cvt_pk_bf16_f32 v%d, v%d, v%d" % (P + 15, pe, pe + 1))
    a("v_add_f32 v%d, v%d, v%d" % (SA, SA, pe))
    a("v_add_f32 v%d, v%d, v%d" % (SA + 1, SA + 1, pe + 1))
    a("v_add_f32 v%d, v%d, v%d" % (T1, SA, SA + 1))
    a("v_cmp_lt_f32 vcc, s26, v%d" % T1)
    a("s_mov_b32 s22, 0")
    a("s_cbranch_vccnz L_k2_rare")
    a("v_add_f32 v%d, v%d, v%d" % (LS, LS, T1))
    a("s_add_u32 s14, s14, 1")
    a("s_cmp_eq_u32 s15, s16")
    a("s_cbranch_scc1 L_k2_last")
    kprefetch()
    a("s_waitcnt vmcnt(8)")
    a("s_branch L_k2_loop")
    a.label("L_k2_rare")
    a("v_max3_f32 v%d, v%d, v%d, v%d" % (T1, S, S + 1, S + 2))
    a("v_max3_f32 v%d, v%d, v%d, v%d" % (T2, S + 3, S + 4, S + 5))
    for i in range(6, 30, 4):
        a("v_max3_f32 v%d, v%d, v%d, v%d" % (T1, T1, S + i, S + i + 1))
        a("v_max3_f32 v%d, v%d, v%d, v%d" % (T2, T2, S + i + 2, S + i + 3))
    a("v_max3_f32 v%d, v%d, v%d, v%d" % (T1, T1, S + 30, S + 31))
    a("v_max_f32 v%d, v%d, v%d" % (T1, T1, T2))
    a("v_mov_b32 v%d, v%d" % (T2, T1))
    a("v_permlane32_swap_b32 v%d, v%d" % (T1, T2))
    a("v_max_f32 v%d, v%d, v%d" % (T1, T1, T2))
    a("v_max_f32 v%d, s22, v%d" % (T1, T1))
    a("v_max_f32 v%d, 0, v%d" % (T2, T1))
    a("v_sub_f32 v%d, 0, v%d" % (T2, T2))
    a("v_exp_f32 v%d, v%d" % (T2, T2))
    a("v_add_f32 v%d, v%d, v%d" % (MU, MU, T1))
    for i in range(32): a("v_sub_f32 v%d, v%d, v%d" % (S + i, S + i, T1))
    for i in range(16): a("v_sub_f32 v%d, 0, v%d" % (NEGM + i, MU))
    a("v_mul_f32 v%d, v%d, v%d" % (LS, LS, T2))
    for i in range(64): a("v_mul_f32 v%d, v%d, v%d" % (O + i, O + i, T2))
    a("s_branch L_k2_exp")
    a.label("L_k2_last")
    a("s_waitcnt vmcnt(8)")
    a("s_barrier")
    a.lg = []
    mphase(False, True, 0)
    a("v_sub_u32 v%d, v%d, v%d" % (STA, VA, L16))
    a("v_lshrrev_b32 v%d, 2, v%d" % (T1, L16))
    a("v_add_u32 v%d, v%d, v%d" % (STA, STA, T1))
    a("s_lshl_b32 s23, s7, 9")
    a("v_add_u32 v%d, s23, v%d" % (STA, STA))
    a("v_xor_b32 v%d, 0x4000, v%d" % (VA, VA))
    a("v_xor_b32 v%d, 0x4000, v%d" % (VA, VA))
    a("v_mov_b32 v%d, v%d" % (T1, LS))
    a("v_permlane32_swap_b32 v%d, v%d" % (LS, T1))
    a("v_add_f32 v%d, v%d, v%d" % (LS, LS, T1))
    a("v_xor_b32 v%d, 0x10000, v%d" % (T5, STA))
    a("s_lshl_b32 s37, s17, 2")
    a("s_add_u32 s37, s37, s7")
    a("s_lshl_b32 s37, s37, 8")
    a("s_lshl_b32 s23, s4, 3")
    a("s_add_u32 s37, s37, s23")
    a("s_lshl_b32 s37, s37, 10")
    a("s_add_u32 s37, s37, 0x%x" % WS_C)
    a("s_mov_b32 s17, s5")
    a("s_barrier")
    qload()

    def finalize(own):
        a("v_max_f32 v%d, v%d, v%d" % (T1, MU, T3))
        a("v_sub_f32 v%d, v%d, v%d" % (T2, MU, T1))
        a("v_sub_f32 v%d, v%d, v%d" % (T3, T3, T1))
        a("v_exp_f32 v%d, v%d" % (T2, T2))
        a("v_exp_f32 v%d, v%d" % (T3, T3))
        a("v_mul_f32 v%d, v%d, v%d" % (T1, T2, LS))
        a("v_fmac_f32 v%d, v%d, v%d" % (T1, T3, T4))
        a("v_rcp_f32 v%d, v%d" % (T1, T1))
        a("v_mul_f32 v%d, v%d, v%d" % (T2, T2, T1))
        a("v_mul_f32 v%d, v%d, v%d" % (T3, T3, T1))
        for i in range(32):
            a("v_mul_f32 v%d, v%d, v%d" % (own + i, own + i, T2))
            a("v_fmac_f32 v%d, v%d, v%d" % (own + i, SAVE + i, T3))
        for g in range(4):
            for i in range(4):
                a("v_cvt_pk_bf16_f32 v%d, v%d, v%d" % (own + 8 * g + i, own + 8 * g + 2 * i, own + 8 * g + 2 * i + 1))
            off = ((own - O) // 8 + g) * 1024
            if off >= 4096:
                if g == 0: a("s_add_u32 s37, s37, 4096")
                off -= 4096
            a("buffer_store_dwordx4 %s, v%d, s[8:11], s37 offen offset:%d %s" % (v(own + 8 * g, 4), L16, off, stf))

    a("s_cmp_eq_u32 s6, 0")
    a("s_cbranch_scc0 L_k2_mergeB")
    a("ds_write_b32 v%d, v%d" % (STA, MU))
    a("ds_write_b32 v%d, v%d offset:256" % (STA, LS))
    for i in range(8):
        a("ds_write_b128 v%d, %s offset:%d" % (SCR, v(O + 32 + 4 * i, 4), 1024 * i))
    a("s_waitcnt lgkmcnt(0)")
    a("s_barrier")
    a("s_barrier")
    a("ds_read_b32 v%d, v%d" % (T3, T5))
    a("ds_read_b32 v%d, v%d offset:256" % (T4, T5))
    for i in range(8):
        a("ds_read_b128 %s, v%d offset:%d" % (v(SAVE + 4 * i, 4), SCR, 1024 * i))
    a("s_waitcnt lgkmcnt(0)")
    finalize(O)
    a("s_branch L_k2_next")
    a.label("L_k2_mergeB")
    a("ds_write_b32 v%d, v%d" % (STA, MU))
    a("ds_write_b32 v%d, v%d offset:256" % (STA, LS))
    a("ds_read_b32 v%d, v%d" % (T3, T5))
    a("ds_read_b32 v%d, v%d offset:256" % (T4, T5))
    for i in range(8):
        a("ds_read_b128 %s, v%d offset:%d" % (v(SAVE + 4 * i, 4), SCR, 1024 * i))
    a("s_waitcnt lgkmcnt(0)")
    for i in range(8):
        a("ds_write_b128 v%d, %s offset:%d" % (SCR, v(O + 4 * i, 4), 1024 * i))
    a("s_waitcnt lgkmcnt(0)")
    a("s_barrier")
    finalize(O + 32)
    a.label("L_k2_next")
    a("s_add_u32 s25, s25, 1")
    a("s_cmp_eq_u32 s25, 2")
    a("s_cbranch_scc1 L_k2_end")
    a("s_waitcnt vmcnt(4)")
    a("s_branch L_k2_qblock")
    a.label("L_k2_end")
    a("s_endpgm")
    return a.lines
```

```python
from asmlib import *
from k1 import srd, f32bits, WS_Q, WS_K, WS_V, WS_C

K3_LDS = 131072


def gen_k3_body(a, endlabel):
    ACC, AF, BF = 0, 64, 128
    VW, VT, VL16, VRD, VO, VTMP = 160, 161, 163, 164, 165, 168
    a("s_load_dwordx2 s[40:41], s[0:1], 40")
    a("s_load_dwordx2 s[42:43], s[0:1], 136")
    a("s_load_dwordx2 s[44:45], s[0:1], 120")
    a("v_lshrrev_b32 v%d, 6, v0" % VTMP)
    a("v_readfirstlane_b32 s3, v%d" % VTMP)
    a("v_and_b32 v%d, 63, v0" % VTMP)
    a("s_and_b32 s4, s2, 7")
    a("s_lshl_b32 s4, s4, 2")
    a("s_lshr_b32 s5, s2, 3")
    a("s_and_b32 s5, s5, 3")
    a("s_add_u32 s4, s4, s5")
    a("s_lshr_b32 s5, s2, 5")
    L = VTMP; T1 = VTMP + 1; T2 = VTMP + 2; T3 = VTMP + 3
    a("v_lshrrev_b32 v%d, 3, v%d" % (T1, L))
    a("v_and_b32 v%d, 7, v%d" % (T2, L))
    a("v_bfe_u32 v%d, v%d, 4, 1" % (T3, L))
    a("v_lshlrev_b32 v%d, 2, v%d" % (T3, T3))
    a("v_xor_b32 v%d, v%d, v%d" % (T3, T2, T3))
    a("v_lshlrev_b32 v%d, 4, v%d" % (T3, T3))
    a("v_lshl_add_u32 v%d, v%d, 10, v%d" % (VW, T1, T3))
    a("v_lshlrev_b32 v%d, 4, v%d" % (VL16, L))
    a("s_lshl_b32 s20, s3, 14")
    a("v_lshrrev_b32 v%d, 5, v%d" % (T1, L))
    a("v_lshlrev_b32 v%d, 9, v%d" % (T1, T1))
    a("v_bfe_u32 v%d, v%d, 2, 2" % (T2, L))
    a("v_lshl_add_u32 v%d, v%d, 7, v%d" % (T1, T2, T1))
    a("v_bfe_u32 v%d, v%d, 4, 1" % (T3, L))
    a("v_lshl_add_u32 v%d, v%d, 5, v%d" % (T1, T3, T1))
    a("v_and_b32 v%d, 3, v%d" % (T3, L))
    a("v_lshl_add_u32 v%d, v%d, 3, v%d" % (T1, T3, T1))
    a("v_add_u32 v%d, s20, v%d" % (T1, T1))
    a("v_bfe_u32 v%d, v%d, 3, 1" % (T2, L))
    for nt in range(2):
        a("v_xor_b32 v%d, %d, v%d" % (T3, nt, T2))
        a("v_lshl_add_u32 v%d, v%d, 6, v%d" % (VT + nt, T3, T1))
    a("v_and_b32 v%d, 31, v%d" % (T1, L))
    a("v_lshlrev_b32 v%d, 11, v%d" % (T1, T1))
    a("v_lshrrev_b32 v%d, 5, v%d" % (T2, L))
    a("v_lshl_add_u32 v%d, v%d, 4, v%d" % (VO, T2, T1))
    a("s_waitcnt lgkmcnt(0)")
    srd(a, 8, 40, 41, 4096 * 512 * 2)
    srd(a, 12, 42, 43, 64 << 20)
    srd(a, 16, 44, 45, 2048 * 1024 * 2)
    a("s_lshl_b32 s6, s3, 19")
    a("s_lshl_b32 s7, s5, 7")
    a("s_add_u32 s6, s6, s7")
    a("s_lshl_b32 s7, s4, 19")
    a("s_lshl_b32 s21, s3, 15")
    a("s_add_u32 s7, s7, s21")
    a("s_add_u32 s7, s7, 0x%x" % WS_C)
    a("s_add_u32 s21, s7, 0x40000")

    def bdma(sl):
        for i in range(4):
            a("s_add_u32 s22, s6, 0x%x" % ((32 * sl + 8 * i) * 1024))
            a("s_add_u32 m0, s20, 0x%x" % ((sl % 4) * 4096 + i * 1024))
            a.vmem("buffer_load_dwordx4 v%d, s[8:11], s22 offen lds" % VW, ("b", sl))

    def aload(ks):
        if ks % 4 == 0 and ks > 0:
            a("s_add_u32 s7, s7, 4096"); a("s_add_u32 s21, s21, 4096")
        for q in range(2):
            a.vmem("buffer_load_dwordx4 %s, v%d, s[12:15], s%d offen offset:%d" % (v(AF + 8 * (ks % 8) + 4 * q, 4), VL16, 7 if q == 0 else 21, (ks % 4) * 1024), ("a", ks))

    def bread(f):
        ks, mt2 = f // 2, f % 2
        sl = ks // 2
        reg = BF + 4 * (f % 8)
        for e in range(2):
            a.lds("ds_read_b64_tr_b16 %s, v%d offset:%d" % (v(reg + 2 * e, 2), VT + mt2, (sl % 4) * 4096 + (16 * (ks % 2) + 8 * e) * 128), ("f", f))

    AD = 6
    for sl in range(3):
        bdma(sl)
        aload(2 * sl); aload(2 * sl + 1)
    nread = 0
    for ks in range(32):
        sl = ks // 2
        if ks % 2 == 0:
            if sl + 3 < 16: bdma(sl + 3)
        if ks + AD < 32: aload(ks + AD)
        while nread < min(64, 2 * ks + 4):
            if nread % 4 == 0: a.wait_vm(("b", nread // 4))
            bread(nread); nread += 1
        a.wait_vm(("a", ks))
        for mt2 in range(2):
            f = 2 * ks + mt2
            a.wait_lg(("f", f))
            for q in range(2):
                acc = v(ACC + 16 * (2 * mt2 + q), 16)
                a("v_mfma_f32_32x32x16_bf16 %s, %s, %s, %s" % (acc, v(BF + 4 * (f % 8), 4), v(AF + 8 * (ks % 8) + 4 * q, 4), "0" if ks == 0 else acc))
    a("v_add_u32 v%d, s20, v%d" % (VRD, VL16))
    for i in range(16):
        a("ds_write_b128 v%d, %s offset:%d" % (VRD, v(ACC + 4 * i, 4), 1024 * i))
    a("s_waitcnt lgkmcnt(0)")
    a("s_barrier")
    a("s_lshl_b32 s22, s3, 11")
    a("v_add_u32 v%d, s22, v%d" % (VRD, VL16))
    a("v_add_u32 v%d, 0x10000, v%d" % (VTMP, VRD))
    for w in range(8):
        for q in range(2):
            a("ds_read_b128 %s, v%d offset:%d" % (v(64 + 8 * w + 4 * q, 4), VRD if w < 4 else VTMP, (w % 4) * 16384 + q * 1024))
    a("s_waitcnt lgkmcnt(0)")
    for step in (32, 16, 8):
        for i in range(step):
            a("v_add_f32 v%d, v%d, v%d" % (64 + i, 64 + i, 64 + step + i))
    for q in range(2):
        a("v_cvt_pk_bf16_f32 v%d, v%d, v%d" % (0 + 2 * q, 64 + 4 * q, 65 + 4 * q))
        a("v_cvt_pk_bf16_f32 v%d, v%d, v%d" % (1 + 2 * q, 66 + 4 * q, 67 + 4 * q))
    a("v_permlane32_swap_b32 v0, v2")
    a("v_permlane32_swap_b32 v1, v3")
    a("s_lshr_b32 s22, s3, 1")
    a("s_and_b32 s23, s22, 1")
    a("s_lshl_b32 s23, s23, 16")
    a("s_lshl_b32 s24, s4, 17")
    a("s_add_u32 s23, s23, s24")
    a("s_lshr_b32 s22, s22, 1")
    a("s_lshl_b32 s22, s22, 6")
    a("s_add_u32 s23, s23, s22")
    a("s_and_b32 s22, s3, 1")
    a("s_lshl_b32 s22, s22, 5")
    a("s_add_u32 s23, s23, s22")
    a("s_lshl_b32 s22, s5, 7")
    a("s_add_u32 s23, s23, s22")
    a("buffer_store_dwordx4 v[0:3], v%d, s[16:19], s23 offen" % VO)


def gen_k3(name):
    a = Asm()
    a.label(name)
    a("s_cmp_ge_u32 s2, 256")
    a("s_cbranch_scc1 L_k3_end")
    gen_k3_body(a, "L_k3_end")
    a.label("L_k3_end")
    a("s_endpgm")
    return a.lines
```

```python
from asmlib import *
from k1 import srd, f32bits
import math

CSTR = 4160 + 32
UCH = 8 * CSTR
L_KB = 0
L_PAR = L_KB + 2 * 5120
L_TAB = L_PAR + 4096
L_UB = L_TAB + 40960
L_U = 0
K4_LDS = L_UB + 2 * UCH


def gen_ssm_body(a, wgreg="s2"):
    L, T1, T2, T3, T4 = 1, 2, 3, 4, 5
    UR = 8
    a("s_load_dwordx4 s[32:35], s[0:1], 48")
    a("s_load_dwordx4 s[36:39], s[0:1], 64")
    a("s_load_dwordx4 s[40:43], s[0:1], 80")
    a("s_load_dwordx4 s[44:47], s[0:1], 96")
    a("s_load_dwordx4 s[48:51], s[0:1], 112")
    a("v_lshrrev_b32 v%d, 6, v0" % T1)
    a("v_readfirstlane_b32 s3, v%d" % T1)
    a("v_and_b32 v%d, 63, v0" % L)
    a("s_lshl_b32 s4, %s, 2" % wgreg)
    a("s_waitcnt lgkmcnt(0)")
    a("s_load_dword s5, s[46:47], s4")
    a("s_load_dword s6, s[48:49], s4")
    srd(a, 8, 32, 33, 2048 * 512 * 2)
    srd(a, 12, 50, 51, 2048 * 1024 * 2)
    a("v_lshlrev_b32 v%d, 10, v0" % T1)
    for r in range(4):
        a("s_add_u32 s7, s4, 0x%x" % (r * 512 * 1024))
        a("buffer_load_dword v%d, v%d, s[8:11], s7 offen" % (UR + r, T1))
    a("v_mov_b32 v16, 0"); a("v_mov_b32 v17, 0"); a("v_mov_b32 v18, 0"); a("v_mov_b32 v19, 0")
    a("s_cmp_ge_u32 s3, 2")
    a("s_cbranch_scc1 L_ssm_nz")
    a("v_lshrrev_b32 v%d, 4, v0" % T1)
    a("v_mul_u32_u24 v%d, 1280, v%d" % (T1, T1))
    a("v_and_b32 v%d, 15, v0" % T2)
    a("v_lshl_add_u32 v%d, v%d, 4, v%d" % (T1, T2, T1))
    a("ds_write_b128 v%d, v[16:19] offset:%d" % (T1, L_KB))
    a.label("L_ssm_nz")
    a("s_cmp_lg_u32 s3, 2")
    a("s_cbranch_scc1 L_ssm_nz2")
    a("v_and_b32 v%d, 7, v%d" % (T1, L))
    a("v_min_u32 v%d, 5, v%d" % (T1, T1))
    a("v_lshlrev_b32 v%d, 4, v%d" % (T1, T1))
    a("v_bfe_u32 v%d, v%d, 3, 1" % (T2, L))
    a("v_mul_u32_u24 v%d, %d, v%d" % (T2, UCH, T2))
    a("v_add_u32 v%d, v%d, v%d" % (T1, T1, T2))
    a("v_add_u32 v%d, %d, v%d" % (T1, L_UB, T1))
    a("ds_write_b128 v%d, v[16:19] offset:%d" % (T1, L_U + 4096))
    a.label("L_ssm_nz2")
    a("s_cmp_lt_u32 s3, 4")
    a("s_cbranch_scc1 L_ssm_nopar")
    a("v_subrev_u32 v%d, 256, v0" % T1)
    a("v_lshlrev_b32 v%d, 1, v%d" % (T2, T1))
    a("s_lshl_b32 s7, %s, 9" % wgreg)
    srcs = [(34, 35), (36, 37), (38, 39), (40, 41), (42, 43), (44, 45)]
    for i, (lo, hi) in enumerate(srcs):
        srd(a, 16, lo, hi, 512 * 128 * 2)
        a("buffer_load_ushort v%d, v%d, s[16:19], s7 offen" % (20 + i, T2))
    a("s_waitcnt lgkmcnt(0)")
    a("s_lshl_b32 s16, s5, 16")
    a("s_and_b32 s17, s5, 0xffff0000")
    a("v_mov_b32 v%d, s16" % T3)
    a("v_mov_b32 v%d, s17" % T4)
    a("v_cmp_gt_u32 vcc, 128, v%d" % T1)
    a("v_cndmask_b32 v%d, v%d, v%d, vcc" % (T3, T4, T3))
    a("v_mul_f32 v%d, 0x%08x, v%d" % (T3, f32bits(math.log2(math.e)), T3))
    a("v_exp_f32 v%d, v%d" % (T3, T3))
    a("v_cvt_pk_bf16_f32 v%d, v%d, v%d" % (T3, T3, T3))
    a("v_lshlrev_b32 v%d, 16, v%d" % (T3, T3))
    a("s_waitcnt vmcnt(0)")
    for i in range(6): a("v_lshlrev_b32 v%d, 16, v%d" % (20 + i, 20 + i))
    a("v_mul_f32 v28, v%d, v20" % T3)
    a("v_mul_f32 v28, 0x%08x, v28" % f32bits(math.log2(math.e)))
    a("v_mul_f32 v29, v%d, v21" % T3)
    a("v_mul_f32 v29, 0x%08x, v29" % f32bits(1.0 / (2 * math.pi)))
    a("v_mul_f32 v22, v%d, v22" % T3)
    a("v_mul_f32 v23, v%d, v23" % T3)
    a("v_mul_f32 v30, v24, v22")
    a("v_fma_f32 v30, -v25, v23, v30")
    a("v_mul_f32 v31, v24, v23")
    a("v_fmac_f32 v31, v25, v22")
    a("v_lshlrev_b32 v%d, 4, v%d" % (T1, T1))
    a("ds_write_b128 v%d, v[28:31] offset:%d" % (T1, L_PAR))
    a.label("L_ssm_nopar")
    a("s_waitcnt vmcnt(0)")
    a("v_sub_u32 v%d, 2047, v0" % T1)
    a("v_lshlrev_b32 v%d, 1, v%d" % (T1, T1))
    a("v_add_u32 v%d, %d, v%d" % (T1, L_UB - 3072, T1))
    for r in range(4):
        a("ds_write_b16 v%d, v%d offset:%d" % (T1, UR + r, L_U + (3 - r) * 1024))
        a("ds_write_b16_d16_hi v%d, v%d offset:%d" % (T1, UR + r, L_U + UCH + (3 - r) * 1024))
    a("s_waitcnt lgkmcnt(0)")
    a("s_barrier")
    a("v_lshrrev_b32 v%d, 8, v0" % T1)
    a("v_mul_u32_u24 v%d, %d, v%d" % (T1, UCH, T1))
    a("v_and_b32 v%d, 255, v0" % T2)
    a("v_lshl_add_u32 v%d, v%d, 4, v%d" % (T1, T2, T1))
    a("v_add_u32 v%d, %d, v%d" % (T1, L_UB, T1))

    def shifts(extra):
        a("ds_read_b128 v[32:35], v%d offset:%d" % (T1, L_U + extra))
        a("ds_read_b128 v[36:39], v%d offset:%d" % (T1, L_U + extra + 16))
        a("s_waitcnt lgkmcnt(0)")
        for sft in range(1, 8):
            d = 40 + 4 * (sft % 4)
            for k in range(4):
                w = 32 + sft // 2 + k
                if sft % 2 == 0:
                    a("v_mov_b32 v%d, v%d" % (d + k, w))
                else:
                    a("v_alignbyte_b32 v%d, v%d, v%d, 2" % (d + k, w + 1, w))
            a("ds_write_b128 v%d, %s offset:%d" % (T1, v(d, 4), L_U + extra + sft * CSTR))
    shifts(0)
    a("v_cmp_gt_u32 vcc, 4, v%d" % T2)
    a("s_and_saveexec_b64 s[16:17], vcc")
    a("s_cbranch_execz L_ssm_noext")
    for sft in range(1, 8):
        a("ds_write_b128 v%d, v[16:19] offset:%d" % (T1, L_U + 4096 + sft * CSTR))
    a.label("L_ssm_noext")
    a("s_mov_b64 exec, s[16:17]")
    ACC = 64
    FI, FI16, PA, K2K = 12, 13, 14, 15
    a("v_and_b32 v%d, 15, v%d" % (T1, L))
    a("v_cvt_f32_u32 v%d, v%d" % (FI, T1))
    a("v_mul_f32 v%d, 16.0, v%d" % (FI16, FI)) if False else a("v_mul_f32 v%d, 0x41800000, v%d" % (FI16, FI))
    a("v_lshrrev_b32 v%d, 4, v%d" % (T1, L))
    a("s_lshl_b32 s7, s3, 9")
    a("v_lshlrev_b32 v%d, 4, v%d" % (T1, T1))
    a("v_add_u32 v%d, s7, v%d" % (PA, T1))
    a("v_mov_b32 v%d, 0" % K2K)
    for i in range(16): a("v_mov_b32 v%d, 0" % (ACC + i))
    for t in range(8):
        a("ds_read_b128 v[%d:%d], v%d offset:%d" % (96 + 4 * t, 99 + 4 * t, PA, L_PAR + 64 * t))
    a("s_waitcnt lgkmcnt(0)")
    E = 32
    X = 50
    for t in range(8):
        pa, pb, wr, wi = 96 + 4 * t, 97 + 4 * t, 98 + 4 * t, 99 + 4 * t
        for lvl, f in ((0, FI), (4, FI16)):
            er, ei = E + 2 * lvl, E + 2 * lvl + 1
            x = X + (0 if lvl == 0 else 4)
            a("v_mul_f32 v%d, v%d, v%d" % (x, pa, f))
            a("v_mul_f32 v%d, v%d, v%d" % (x + 1, pb, f))
            a("v_exp_f32 v%d, v%d" % (x, x))
            a("v_fract_f32 v%d, v%d" % (x + 1, x + 1))
            a("v_cos_f32 v%d, v%d" % (x + 2, x + 1))
            a("v_sin_f32 v%d, v%d" % (x + 3, x + 1))
            a("v_mul_f32 v%d, v%d, v%d" % (er, x, x + 2))
            a("v_mul_f32 v%d, v%d, v%d" % (ei, x, x + 3))
        for k in (1, 5, 2, 6, 3, 7, 8):
            sr, si = E + 2 * (k - 1), E + 2 * (k - 1) + 1
            er, ei = E + 2 * k, E + 2 * k + 1
            a("v_mul_f32 v%d, v%d, v%d" % (X, si, si))
            a("v_add_f32 v%d, v%d, v%d" % (X + 1, sr, sr))
            a("v_fma_f32 v%d, v%d, v%d, -v%d" % (er, sr, sr, X))
            a("v_mul_f32 v%d, v%d, v%d" % (ei, X + 1, si))
        for r in range(4):
            hr, hi_ = E + 2 * (4 + r), E + 2 * (4 + r) + 1
            ar, ai = 84 + 2 * r, 85 + 2 * r
            a("v_mul_f32 v%d, v%d, v%d" % (ar, wr, hr))
            a("v_fma_f32 v%d, -v%d, v%d, v%d" % (ar, wi, hi_, ar))
            a("v_mul_f32 v%d, v%d, v%d" % (ai, wr, hi_))
            a("v_fma_f32 v%d, -v%d, v%d, -v%d" % (ai, wi, hr, ai))
        a("v_fmac_f32 v%d, v%d, v%d" % (K2K, wr, E + 16))
        a("v_fma_f32 v%d, -v%d, v%d, v%d" % (K2K, wi, E + 17, K2K))
        for r in range(4):
            acc = v(ACC + 4 * r, 4)
            a("v_mfma_f32_16x16x4_f32 %s, v%d, v%d, %s" % (acc, 84 + 2 * r, E + 2 * r, acc))
        for r in range(4):
            acc = v(ACC + 4 * r, 4)
            a("v_mfma_f32_16x16x4_f32 %s, v%d, v%d, %s" % (acc, 85 + 2 * r, E + 2 * r + 1, acc))
    a("v_and_b32 v%d, 15, v%d" % (T1, L))
    a("v_lshrrev_b32 v%d, 4, v%d" % (T2, L))
    a("v_lshl_add_u32 v%d, v%d, 6, v%d" % (T1, T2, T1))
    a("v_lshlrev_b32 v%d, 2, v%d" % (T1, T1))
    a("s_mul_i32 s7, s3, 5120")
    a("v_add_u32 v%d, s7, v%d" % (T1, T1))
    for r in range(4):
        for i in range(4):
            a("ds_write_b32 v%d, v%d offset:%d" % (T1, ACC + 4 * r + i, L_TAB + r * 1024 + i * 64))
    a("v_lshlrev_b32 v%d, 2, v%d" % (T2, L))
    a("v_add_u32 v%d, s7, v%d" % (T2, T2))
    a("ds_write_b32 v%d, v%d offset:%d" % (T2, K2K, L_TAB + 4096))
    a("s_waitcnt lgkmcnt(0)")
    a("s_barrier")
    a("v_and_b32 v%d, 255, v0" % T2)
    a("v_lshrrev_b32 v%d, 8, v0" % T1)
    a("v_mul_u32_u24 v%d, 20480, v%d" % (T3, T1))
    for e in range(8):
        x = 32 + e
        a("v_lshl_add_u32 v%d, v%d, 3, %d" % (x, T2, e))
        a("v_cvt_f32_u32 v%d, v%d" % (x, x))
        a("v_cvt_pk_bf16_f32 v%d, v%d, v%d" % (x, x, x))
        a("v_lshlrev_b32 v%d, 16, v%d" % (x, x))
        a("v_cvt_u32_f32 v%d, v%d" % (40 + e, x))
        a("v_lshrrev_b32 v%d, 23, v%d" % (x, x))
        a("v_subrev_u32 v%d, 134, v%d" % (x, x))
        a("v_max_i32 v%d, 0, v%d" % (x, x))
        a("v_lshrrev_b32 v%d, v%d, v%d" % (40 + e, x, 40 + e))
        a("v_lshl_add_u32 v%d, v%d, 8, v%d" % (x, x, 40 + e))
        a("v_lshl_add_u32 v%d, v%d, 2, v%d" % (x, x, T3))
    for w in range(4):
        for kk in range(4):
            a("ds_read_b32 v%d, v%d offset:%d" % (48 + 4 * w + kk, T3, L_TAB + w * 5120 + 4096 + (16 * kk + 8) * 4))
    for e in range(8):
        for w in range(4):
            a("ds_read_b32 v%d, v%d offset:%d" % (64 + 4 * e + w, 32 + e, L_TAB + w * 5120))
        if e == 2: a("s_waitcnt lgkmcnt(0)")
        if e == 5: a("s_waitcnt lgkmcnt(0)")
    a("s_waitcnt lgkmcnt(0)")
    for st in (8, 4, 2, 1):
        for i in range(st): a("v_add_f32 v%d, v%d, v%d" % (48 + i, 48 + i, 48 + st + i))
    for e in range(8):
        b = 64 + 4 * e
        a("v_add_f32 v%d, v%d, v%d" % (b, b, b + 1))
        a("v_add_f32 v%d, v%d, v%d" % (b + 2, b + 2, b + 3))
        a("v_add_f32 v%d, v%d, v%d" % (b, b, b + 2))
    a("v_cmp_eq_u32 vcc, 255, v%d" % T2)
    for e in range(4, 8):
        a("v_cndmask_b32 v%d, v%d, v48, vcc" % (64 + 4 * e, 64 + 4 * e))
    for i in range(4):
        a("v_cvt_pk_bf16_f32 v%d, v%d, v%d" % (32 + i, 64 + 8 * i, 68 + 8 * i))
    a("v_and_b32 v%d, 3, v%d" % (T3, T2))
    a("v_mul_u32_u24 v%d, 1280, v%d" % (T3, T3))
    a("v_mul_u32_u24 v%d, 5120, v%d" % (T1, T1))
    a("v_add_u32 v%d, v%d, v%d" % (T3, T3, T1))
    a("v_lshrrev_b32 v%d, 2, v%d" % (T2, T2))
    a("v_lshl_add_u32 v%d, v%d, 4, v%d" % (T3, T2, T3))
    a("ds_write_b128 v%d, v[32:35] offset:%d" % (T3, L_KB + 256))
    a("s_waitcnt lgkmcnt(0)")
    a("s_barrier")
    AA, BA = 12, 13
    a("v_and_b32 v%d, 15, v%d" % (T1, L))
    a("v_lshrrev_b32 v%d, 4, v%d" % (T2, L))
    a("v_sub_u32 v%d, 7, v%d" % (T3, T1))
    a("v_and_b32 v%d, 7, v%d" % (T3, T3))
    a("v_mul_u32_u24 v%d, %d, v%d" % (AA, CSTR, T3))
    a("v_lshrrev_b32 v%d, 3, v%d" % (T3, T1))
    a("v_sub_u32 v%d, v%d, v%d" % (T3, T2, T3))
    a("v_lshl_add_u32 v%d, v%d, 4, v%d" % (AA, T3, AA))
    a("s_lshr_b32 s7, s3, 2")
    a("s_mul_i32 s16, s7, %d" % UCH)
    a("s_bfe_u32 s17, s3, 0x10001")
    a("s_lshl_b32 s18, s17, 5")
    a("s_sub_u32 s16, s16, s18")
    a("s_add_u32 s16, s16, %d" % (L_UB + 4080 - 64 * 15))
    a("v_add_u32 v%d, s16, v%d" % (AA, AA))
    a("v_mul_u32_u24 v%d, 1280, v%d" % (BA, T2))
    a("v_lshl_add_u32 v%d, v%d, 4, v%d" % (BA, T1, BA))
    a("s_mul_i32 s16, s7, 5120")
    a("s_add_u32 s16, s16, %d" % (L_KB + 16))
    a("v_add_u32 v%d, s16, v%d" % (BA, BA))
    for i in range(8): a("v_mov_b32 v%d, 0" % (64 + i))
    a("s_and_b32 s16, s3, 1")
    a("s_cmp_eq_u32 s16, 1")
    a("s_cbranch_scc1 L_ssm_conv1")

    def conv(ntb, nts):
        a.lg = []
        seq = []
        for blk in range(ntb + 1):
            for mm in range(16):
                seq.append(("a", blk, mm))
                seq.append(("b", blk, mm, ntb))
                if blk <= nts: seq.append(("b", blk, mm, nts))
        NRG = 12; DD = 8
        issued = [0]
        curblk = [0]
        def issue():
            if issued[0] >= len(seq): return
            it = seq[issued[0]]
            reg = 80 + 4 * (issued[0] % NRG)
            blk, mm = it[1], it[2]
            if blk != curblk[0]:
                a("v_subrev_u32 v%d, 1024, v%d" % (AA, AA))
                a("v_subrev_u32 v%d, 256, v%d" % (BA, BA))
                curblk[0] = blk
            if it[0] == "a":
                a.lds("ds_read_b128 %s, v%d offset:%d" % (v(reg, 4), AA, 64 * (15 - mm)), ("c", issued[0]))
            else:
                a.lds("ds_read_b128 %s, v%d offset:%d" % (v(reg, 4), BA, 16 * (15 - mm) + 256 * it[3]), ("c", issued[0]))
            issued[0] += 1
        for _ in range(DD): issue()
        areg = None
        for n, it in enumerate(seq):
            issue()
            reg = 80 + 4 * (n % NRG)
            if it[0] == "a":
                areg = reg
            else:
                a.wait_lg(("c", n))
                acc = v(64 + (0 if it[3] == ntb else 4), 4)
                a("v_mfma_f32_16x16x32_bf16 %s, %s, %s, %s" % (acc, v(areg, 4), v(reg, 4), acc))
        a("v_lshlrev_b32 v%d, 7, v%d" % (T3, T1))
        a("v_lshl_add_u32 v%d, v%d, 4, v%d" % (T3, T2, T3))
        a("s_lshl_b32 s16, s7, 13")
        a("s_lshl_b32 s18, s17, 6")
        a("s_add_u32 s16, s16, s18")
        a("v_add_u32 v%d, s16, v%d" % (T3, T3))
        a("ds_write_b128 v%d, v[64:67] offset:%d" % (T3, L_TAB + ntb * 2048))
        a("ds_write_b128 v%d, v[68:71] offset:%d" % (T3, L_TAB + nts * 2048))
    conv(3, 0)
    a("s_branch L_ssm_convdone")
    a.label("L_ssm_conv1")
    conv(2, 1)
    a.label("L_ssm_convdone")
    a("s_waitcnt lgkmcnt(0)")
    a("s_barrier")
    a("v_lshlrev_b32 v%d, 2, v0" % T1)
    for r in range(4):
        a("ds_read_b32 v%d, v%d offset:%d" % (32 + 2 * r, T1, L_TAB + r * 2048))
        a("ds_read_b32 v%d, v%d offset:%d" % (33 + 2 * r, T1, L_TAB + 8192 + r * 2048))
    a("s_lshl_b32 s16, s6, 16")
    a("s_and_b32 s17, s6, 0xffff0000")
    a("v_lshlrev_b32 v%d, 11, v0" % T1)
    a("s_waitcnt lgkmcnt(0)")
    for r in range(4):
        y = 32 + 2 * r
        a("v_cvt_pk_bf16_f32 v%d, v%d, v%d" % (y, y, y + 1))
        a("v_lshlrev_b32 v40, 16, v%d" % (UR + r))
        a("v_and_b32 v41, 0xffff0000, v%d" % (UR + r))
        a("v_mul_f32 v40, s16, v40")
        a("v_mul_f32 v41, s17, v41")
        a("v_cvt_pk_bf16_f32 v40, v40, v41")
        a("v_lshlrev_b32 v42, 16, v%d" % y)
        a("v_and_b32 v43, 0xffff0000, v%d" % y)
        a("v_lshlrev_b32 v41, 16, v40")
        a("v_and_b32 v40, 0xffff0000, v40")
        a("v_add_f32 v42, v42, v41")
        a("v_add_f32 v43, v43, v40")
        a("v_cvt_pk_bf16_f32 v%d, v42, v43" % (44 + r))
        a("s_add_u32 s18, s4, 0x%x" % (r * 512 * 2048 + 1024))
        a("buffer_store_dword v%d, v%d, s[12:15], s18 offen" % (44 + r, T1))


def gen_k4(name):
    a = Asm()
    a.label(name)
    a("s_cmp_ge_u32 s2, 256")
    a("s_cbranch_scc1 L_k4_end")
    gen_ssm_body(a)
    a.label("L_k4_end")
    a("s_endpgm")
    return a.lines
```

```python
import sys
from asmlib import *
import k1, k2, k3, k4

NAME = "concat_heads__compressed_kv_cla__ssm_conv_s4__prompt"
OUT = "cdna_kernels/%s.s" % NAME

def kd(name, vgpr, sgpr=102):
    acc = (vgpr + 3) // 4 * 4
    return """.amdhsa_kernel %s
  .amdhsa_next_free_vgpr %d
  .amdhsa_next_free_sgpr %d
  .amdhsa_accum_offset %d
  .amdhsa_group_segment_fixed_size 0
  .amdhsa_kernarg_size 144
  .amdhsa_user_sgpr_count 2
  .amdhsa_user_sgpr_kernarg_segment_ptr 1
  .amdhsa_system_sgpr_workgroup_id_x 1
.end_amdhsa_kernel
""" % (name, vgpr, sgpr, acc)

def build(kernels, out=OUT):
    head = []
    for (name, lines, grid, block, lds, vgpr) in kernels:
        head.append("; @launch kernel=%s grid=(%d,1,1) block=(%d,1,1) lds=%d" % (name, grid, block, lds))
    txt = "\n".join(head) + "\n"
    txt += '.amdgcn_target "amdgcn-amd-amdhsa--gfx950"\n.text\n'
    for (name, lines, grid, block, lds, vgpr) in kernels:
        txt += ".globl %s\n.p2align 8\n.type %s,@function\n" % (name, name)
        txt += "\n".join(hazard_pass(lines, verbose=True)) + "\n"
    txt += '.section .rodata,"a"\n'
    for (name, lines, grid, block, lds, vgpr) in kernels:
        txt += ".p2align 6\n" + kd(name, vgpr)
    open(out, "w").write(txt)

if __name__ == "__main__":
    ks = [("k1_proj_kernel", k1.gen_k1("k1_proj_kernel"), 256, 512, k1.K1_LDS, 256),
          ("k2_attn_kernel", k2.gen_k2("k2_attn_kernel"), 256, 512, k2.K2_LDS, 256),
          ("k3_out_kernel", k3.gen_k3("k3_out_kernel"), 256, 512, k3.K3_LDS, 176),
          ("k4_ssm_kernel", k4.gen_k4("k4_ssm_kernel"), 256, 512, k4.K4_LDS, 128)]
    build(ks)
```

```python
import sys
from asmlib import *
import k1, k2, k3, k4

NAME = "concat_heads__compressed_kv_cla__ssm_conv_s4__prompt"
OUT = "cdna_kernels/%s.s" % NAME

def kd(name, vgpr, sgpr=102):
    acc = (vgpr + 3) // 4 * 4
    return """.amdhsa_kernel %s
  .amdhsa_next_free_vgpr %d
  .amdhsa_next_free_sgpr %d
  .amdhsa_accum_offset %d
  .amdhsa_group_segment_fixed_size 0
  .amdhsa_kernarg_size 144
  .amdhsa_user_sgpr_count 2
  .amdhsa_user_sgpr_kernarg_segment_ptr 1
  .amdhsa_system_sgpr_workgroup_id_x 1
.end_amdhsa_kernel
""" % (name, vgpr, sgpr, acc)

def build(kernels, out=OUT):
    head = []
    for (name, lines, grid, block, lds, vgpr) in kernels:
        head.append("; @launch kernel=%s grid=(%d,1,1) block=(%d,1,1) lds=%d" % (name, grid, block, lds))
    txt = "\n".join(head) + "\n"
    txt += '.amdgcn_target "amdgcn-amd-amdhsa--gfx950"\n.text\n'
    for (name, lines, grid, block, lds, vgpr) in kernels:
        txt += ".globl %s\n.p2align 8\n.type %s,@function\n" % (name, name)
        txt += "\n".join(hazard_pass(lines, verbose=False)) + "\n"
    txt += '.section .rodata,"a"\n'
    for (name, lines, grid, block, lds, vgpr) in kernels:
        txt += ".p2align 6\n" + kd(name, vgpr, 80)
    open(out, "w").write(txt)

def full(out=OUT, **kw):
    ks = [("k1_proj_kernel", k1.gen_k1("k1_proj_kernel"), 256, 512, k1.K1_LDS, 256),
          ("k2_attn_kernel", k2.gen_k2("k2_attn_kernel"), 256, 512, k2.K2_LDS, 256),
          ("k3_out_kernel", k3.gen_k34("k3_out_kernel", **kw), 512, 512, max(k3.K3_LDS, k4.K4_LDS), 128)]
    build(ks, out)

if __name__ == "__main__":
    full()
    full("var_a.s", ssm_first=False)
```

```python
from asmlib import *
import math, struct

WS_Q = 0
WS_K = 16 << 20
WS_V = 32 << 20
WS_C = 48 << 20
WS_WO = 64 << 20
WS_END = 68 << 20
VSC = 0


def srd(a, d, lo, hi, nbytes):
    a("s_mov_b32 s%d, s%d" % (d, lo))
    a("s_and_b32 s%d, s%d, 0xffff" % (d + 1, hi))
    a("s_mov_b32 s%d, 0x%x" % (d + 2, nbytes))
    a("s_mov_b32 s%d, 0x20000" % (d + 3))


def f32bits(x):
    return struct.unpack("<I", struct.pack("<f", x))[0]


K1_LDS = 65536 + 8 * 12288
XSCHED = {-1: [0, 1], 0: [2, 3], 1: [4, 5], 2: [6, 7], 4: [8], 5: [9], 6: [10], 7: [11], 8: [12], 9: [13, 14], 10: [15]}


def gen_k1(name, nox=False, notr=False, nodma=False, nost=False, stf="sc1", stamp=False, pref=False):
    a = Asm()
    XF, ACC, WF = 0, 128, 192
    VXD, VW, VT, VL16, VXR, VTMP = 224, 225, 226, 228, 229, 236
    NS = 4; D = 6; NR = 8
    XBASE = 65536
    a.label(name)
    a("s_cmp_ge_u32 s2, 256")
    a("s_cbranch_scc1 L_k1_end")
    a("s_load_dwordx4 s[32:35], s[0:1], 0")
    a("s_load_dwordx4 s[36:39], s[0:1], 16")
    a("s_load_dwordx2 s[40:41], s[0:1], 32")
    a("s_load_dwordx2 s[42:43], s[0:1], 136")
    a("s_load_dwordx2 s[52:53], s[0:1], 40")
    a("v_lshrrev_b32 v%d, 6, v0" % VTMP)
    a("v_readfirstlane_b32 s3, v%d" % VTMP)
    a("v_and_b32 v%d, 63, v0" % VTMP)
    a("s_and_b32 s4, s2, 7")
    a("s_lshl_b32 s4, s4, 2")
    a("s_lshr_b32 s5, s2, 3")
    a("s_and_b32 s5, s5, 3")
    a("s_add_u32 s4, s4, s5")
    a("s_lshr_b32 s5, s2, 5")
    L = VTMP; T1 = VTMP + 1; T2 = VTMP + 2; T3 = VTMP + 3
    a("v_lshrrev_b32 v%d, 3, v%d" % (T1, L))
    a("v_and_b32 v%d, 7, v%d" % (T2, L))
    a("v_bfe_u32 v%d, v%d, 4, 1" % (T3, L))
    a("v_lshlrev_b32 v%d, 2, v%d" % (T3, T3))
    a("v_xor_b32 v%d, v%d, v%d" % (T3, T2, T3))
    a("v_lshlrev_b32 v%d, 4, v%d" % (T3, T3))
    a("v_lshl_add_u32 v%d, v%d, 13, v%d" % (VW, T1, T3))
    a("v_lshrrev_b32 v%d, 1, v%d" % (T3, T1))
    a("v_xor_b32 v%d, v%d, v%d" % (T3, T2, T3))
    a("v_lshlrev_b32 v%d, 4, v%d" % (T3, T3))
    a("v_lshl_add_u32 v%d, v%d, 10, v%d" % (VXD, T1, T3))
    a("v_xor_b32 v%d, 64, v%d" % (VTMP + 4, VXD))
    VXD2 = VTMP + 4
    a("v_lshlrev_b32 v%d, 4, v%d" % (VL16, L))
    a("v_and_b32 v%d, 31, v%d" % (T1, L))
    a("v_bfe_u32 v%d, v%d, 1, 3" % (T2, L))
    a("v_lshrrev_b32 v%d, 5, v%d" % (T3, L))
    a("v_xor_b32 v%d, v%d, v%d" % (T2, T2, T3))
    a("v_lshlrev_b32 v%d, 4, v%d" % (T2, T2))
    a("v_lshl_add_u32 v%d, v%d, 7, v%d" % (T1, T1, T2))
    a("s_mul_i32 s50, s3, 12288")
    a("s_add_u32 s50, s50, %d" % XBASE)
    for k in range(4):
        a("v_xor_b32 v%d, %d, v%d" % (T2, 32 * k, T1))
        a("v_add_u32 v%d, s50, v%d" % (VXR + k, T2))
    a("v_lshrrev_b32 v%d, 5, v%d" % (T1, L))
    a("v_lshlrev_b32 v%d, 10, v%d" % (T1, T1))
    a("v_bfe_u32 v%d, v%d, 2, 2" % (T2, L))
    a("v_lshl_add_u32 v%d, v%d, 7, v%d" % (T1, T2, T1))
    a("v_bfe_u32 v%d, v%d, 4, 1" % (T3, L))
    a("v_lshl_add_u32 v%d, v%d, 5, v%d" % (T1, T3, T1))
    a("v_and_b32 v%d, 3, v%d" % (T3, L))
    a("v_lshl_add_u32 v%d, v%d, 3, v%d" % (T1, T3, T1))
    a("v_bfe_u32 v%d, v%d, 3, 1" % (T2, L))
    for nt in range(2):
        a("v_xor_b32 v%d, %d, v%d" % (T3, nt, T2))
        a("v_lshl_add_u32 v%d, v%d, 6, v%d" % (VT + nt, T3, T1))
    a("s_waitcnt lgkmcnt(0)")
    srd(a, 8, 32, 33, 2048 * 512 * 2)
    srd(a, 12, 34, 35, 2048 * 512 * 2)
    srd(a, 16, 36, 37, 512 * 4096 * 2)
    srd(a, 20, 38, 39, 512 * 4096 * 2)
    srd(a, 24, 40, 41, 512 * 4096 * 2)
    srd(a, 28, 42, 43, WS_END)
    srd(a, 56, 52, 53, 4096 * 512 * 2)
    a("s_lshl_b32 s6, s5, 3")
    a("s_add_u32 s6, s6, s3")
    a("s_mov_b32 s47, s6")
    a("s_lshl_b32 s6, s6, 15")
    a("s_lshl_b32 s7, s3, 17")
    a("s_lshl_b32 s46, s4, 8")
    a("s_add_u32 s7, s7, s46")
    a("s_lshl_b32 s44, s3, 11")
    a("s_lshl_b32 s45, s4, 6")
    a("s_add_u32 s45, s45, s47")
    a("s_lshl_b32 s45, s45, 13")
    a("s_lshr_b32 s48, s47, 1")
    a("s_lshl_b32 s46, s4, 5")
    a("s_add_u32 s48, s48, s46")
    a("s_lshl_b32 s48, s48, 14")
    a("s_and_b32 s46, s3, 1")
    a("s_lshl_b32 s46, s46, 11")
    a("s_add_u32 s48, s48, s46")
    a("s_add_u32 s48, s48, 0x%x" % WS_V)
    a("s_mov_b32 s49, 0x%08x" % f32bits((128 ** -0.5) * math.log2(math.e)))
    a("s_mov_b32 s54, 0x%08x" % f32bits(2.0 ** VSC))

    def dostamp(i):
        if not stamp: return
        a("s_memtime s[60:61]")
        a("s_waitcnt lgkmcnt(0)")
        a.lg = []
        a("v_writelane_b32 v250, s60, %d" % i)
    def dma(gc):
        if nodma: return
        hp, c = gc // 4, gc % 4
        mat, nh = hp // 2, hp % 2
        slot = gc % NS
        for i in range(2):
            a("s_add_u32 s46, s7, 0x%x" % ((128 * c + 8 * i) * 8192 + nh * 128))
            a("s_add_u32 m0, s44, 0x%x" % (slot * 16384 + i * 1024))
            a.vmem("buffer_load_dwordx4 v%d, s[%d:%d], s46 offen lds" % (VW, 16 + 4 * mat, 19 + 4 * mat), ("w", gc))

    def xdma(n):
        if nox: return
        which, i = n // 8, n % 8
        slot = n % 3
        for ip in range(4):
            a("s_add_u32 s46, s6, 0x%x" % (ip * 8192 + i * 128))
            a("s_add_u32 m0, s50, 0x%x" % (slot * 4096 + ip * 1024))
            a.vmem("buffer_load_dwordx4 v%d, s[%d:%d], s46 offen lds" % (VXD2 if ip & 1 else VXD, 8 + 4 * which, 11 + 4 * which), ("x", n))

    def xread(n):
        if nox: return
        i = n % 8
        slot = n % 3
        a.wait_vm(("x", n))
        for k in range(4):
            a.lds("ds_read_b128 %s, v%d offset:%d" % (v(XF + 4 * (4 * i + k), 4), VXR + k, slot * 4096), ("xr", n))
        if n + 3 < 16:
            a.wait_lg(("xr", n))
            xdma(n + 3)

    NF = 24 * 16

    def fread(f):
        if notr: return
        gc, r = f // 16, f % 16
        nt, ks = r // 8, r % 8
        slot = gc % NS
        reg = WF + 4 * (f % NR)
        for e in range(2):
            a.lds("ds_read_b64_tr_b16 %s, v%d offset:%d" % (v(reg + 2 * e, 2), VT + nt, slot * 16384 + (16 * ks + 4 * e) * 128), ("f", f))

    def pack(hp, nt2):
        mat = hp // 2
        acc = ACC + 32 * (hp % 2) + 16 * nt2
        if mat == 0:
            for i in range(16):
                a("v_mul_f32 v%d, s49, v%d" % (acc + i, acc + i))
        if mat == 2 and VSC:
            for i in range(16):
                a("v_mul_f32 v%d, s54, v%d" % (acc + i, acc + i))
        for g in range(2):
            for i in range(4):
                a("v_cvt_pk_bf16_f32 v%d, v%d, v%d" % (acc + 8 * g + i, acc + 8 * g + 2 * i, acc + 8 * g + 2 * i + 1))

    def store(hp, nt2, g):
        if nost: return
        mat, nh = hp // 2, hp % 2
        nt = 2 * nh + nt2
        pk = ACC + 32 * (hp % 2) + 16 * nt2 + 8 * g
        if mat < 2:
            ks = 2 * nt + g
            base = (WS_Q if mat == 0 else WS_K) + (ks // 4) * 4096
            a("s_add_u32 s46, s45, 0x%x" % base)
            a.vmem("buffer_store_dwordx4 %s, v%d, s[28:31], s46 offen offset:%d %s" % (v(pk, 4), VL16, (ks % 4) * 1024, stf), "st")
        else:
            a("s_add_u32 s46, s48, 0x%x" % (nt * 4096))
            a.vmem("buffer_store_dwordx4 %s, v%d, s[28:31], s46 offen offset:%d %s" % (v(pk, 4), VL16, g * 1024, stf), "st")

    dostamp(0)
    dma(0)
    xdma(0); xdma(1)
    dma(1)
    xdma(2)
    dma(2)
    if pref:
        a("v_lshrrev_b32 v%d, 3, v%d" % (T1, L))
        a("v_and_b32 v%d, 7, v%d" % (T2, L))
        a("v_lshlrev_b32 v%d, 7, v%d" % (T2, T2))
        a("v_lshl_add_u32 v%d, v%d, 10, v%d" % (T1, T1, T2))
        a("v_lshrrev_b32 v%d, 1, v%d" % (T2, L))
        a("v_and_b32 v%d, 1, v%d" % (T3, L))
        a("v_lshlrev_b32 v%d, 7, v%d" % (T3, T3))
        a("v_lshl_add_u32 v%d, v%d, 13, v%d" % (T2, T2, T3))
        for which in range(2):
            for i in range(4):
                a("s_add_u32 s46, s6, 0x%x" % (i * 8192))
                a.vmem("buffer_load_dword v252, v%d, s[%d:%d], s46 offen" % (T1, 8 + 4 * which, 11 + 4 * which), "pf")
        a("s_lshl_b32 s51, s3, 19")
        a("s_lshl_b32 s46, s4, 8")
        a("s_add_u32 s51, s51, s46")
        for mat in range(3):
            for j in range(2):
                a("s_add_u32 s46, s51, 0x%x" % (j * 32 * 8192))
                a.vmem("buffer_load_dword v252, v%d, s[%d:%d], s46 offen" % (T2, 16 + 4 * mat, 19 + 4 * mat), "pf")
    xsched = XSCHED
    for n in xsched[-1]: xread(n)
    pend_pack = []
    pend_store = []
    for gc in range(24):
        hp, c = gc // 4, gc % 4
        mat = hp // 2
        if gc == 0:
            a.wait_vm(("w", 0))
        if gc + 1 < 24:
            a.wait_vm(("w", gc + 1))
        a("s_barrier")
        dostamp(gc + 1)
        if gc + 3 < 24:
            dma(gc + 3)
        if pend_store and c > 0:
            for _ in range(2 if c == 3 else 1):
                store(*pend_store.pop(0))
        if gc == 0:
            for f in range(D): fread(f)
        for nt in range(2):
            for ks in range(8):
                f = gc * 16 + nt * 8 + ks
                if f + D < NF: fread(f + D)
                a.wait_lg(("f", f))
                if nt == 0 and ks % 4 == 0:
                    a.wait_lg(("xr", (8 if mat > 0 else 0) + 2 * c + ks // 4))
                acc = v(ACC + 32 * (hp % 2) + 16 * nt, 16)
                wf = v(WF + 4 * (f % NR), 4)
                xf = v(XF + 4 * (8 * c + ks), 4)
                cc = "0" if (c == 0 and ks == 0) else acc
                if mat < 2:
                    a("v_mfma_f32_32x32x16_bf16 %s, %s, %s, %s" % (acc, wf, xf, cc))
                else:
                    a("v_mfma_f32_32x32x16_bf16 %s, %s, %s, %s" % (acc, xf, wf, cc))
                if ks == 3 and pend_pack:
                    p = pend_pack.pop(0)
                    pack(*p)
                    pend_store += [(p[0], p[1], 0), (p[0], p[1], 1)]
            if c == 3:
                pend_pack.append((hp, nt))
        for n in xsched.get(gc, []): xread(n)
        if gc == 11:
            WO = VTMP + 6
            a("v_lshrrev_b32 v%d, 13, v%d" % (WO, VW))
            a("v_and_b32 v%d, 0x7f, v%d" % (WO + 1, VW))
            a("v_lshl_add_u32 v%d, v%d, 10, v%d" % (WO, WO, WO + 1))
            a("s_lshl_b32 s51, s2, 14")
            a("s_lshl_b32 s46, s3, 7")
            a("s_add_u32 s51, s51, s46")
            for i in range(2):
                a("s_add_u32 s46, s51, %d" % (i * 8192))
                a("s_add_u32 m0, s50, %d" % (i * 1024))
                a.vmem("buffer_load_dwordx4 v%d, s[56:59], s46 offen lds" % WO, "wo")
        if gc == 15:
            WO = VTMP + 6
            a("v_lshrrev_b32 v%d, 9, v%d" % (WO, VL16))
            a("v_lshlrev_b32 v%d, 9, v%d" % (WO, WO))
            a("v_subrev_u32 v%d, s50, v%d" % (WO, WO))
            a("v_sub_u32 v%d, v%d, v%d" % (WO + 1, VT + 1, WO))
            a("v_sub_u32 v%d, v%d, v%d" % (WO, VT, WO))
            a.wait_vm("wo")
            for mt2 in range(2):
                for e in range(2):
                    a.lds("ds_read_b64_tr_b16 %s, v%d offset:%d" % (v(VTMP + 8 + 4 * mt2 + 2 * e, 2), WO + mt2, 8 * e * 128), "wor")
            a.wait_lg("wor")
            a("s_lshl_b32 s51, s3, 19")
            a("s_lshl_b32 s46, s2, 10")
            a("s_add_u32 s51, s51, s46")
            a("s_add_u32 s51, s51, 0x%x" % WS_WO)
            for mt2 in range(2):
                a("s_add_u32 s46, s51, 0x%x" % (mt2 << 18))
                a.vmem("buffer_store_dwordx4 %s, v%d, s[28:31], s46 offen %s" % (v(VTMP + 8 + 4 * mt2, 4), VL16, stf), "st")
    while pend_pack:
        p = pend_pack.pop(0)
        pack(*p)
        pend_store += [(p[0], p[1], 0), (p[0], p[1], 1)]
    while pend_store:
        store(*pend_store.pop(0))
    if stamp:
        dostamp(25)
        a("s_waitcnt vmcnt(0)")
        dostamp(26)
        a("s_lshl_b32 s46, s2, 3")
        a("s_add_u32 s46, s46, s3")
        a("s_lshl_b32 s46, s46, 8")
        a("s_add_u32 s46, s46, 0x%x" % (60 << 20))
        a("v_lshrrev_b32 v251, 2, v%d" % VL16)
        a("buffer_store_dword v250, v251, s[28:31], s46 offen")
    a.label("L_k1_end")
    a("s_endpgm")
    return a.lines
```

```python
from asmlib import *
from k1 import srd, f32bits, WS_Q, WS_K, WS_V, WS_C
import math

K2_LDS = 163840
BIAS = 0.0
VSC = 0


def gen_k2(name, stf="sc1"):
    a = Asm()
    Q, O, S, P, NEGM, SAVE, FR, E = 0, 32, 96, 128, 144, 160, 192, 224
    KA, VA, L16, MU, LS = 232, 233, 234, 235, 236
    SA, SB = 238, 240
    THR, T1, T2, NINF, SCR, T3, T4, T5, STA = 242, 243, 244, 245, 246, 247, 248, 249, 250
    NR, D = 8, 6
    a.label(name)
    a("s_cmp_ge_u32 s2, 256")
    a("s_cbranch_scc1 L_k2_end")
    a("s_load_dwordx2 s[42:43], s[0:1], 136")
    a("v_lshrrev_b32 v%d, 6, v0" % T1)
    a("v_readfirstlane_b32 s3, v%d" % T1)
    a("v_and_b32 v%d, 63, v0" % T1)
    a("v_lshlrev_b32 v%d, 4, v%d" % (L16, T1))
    a("s_and_b32 s4, s2, 7")
    a("s_lshl_b32 s4, s4, 2")
    a("s_lshr_b32 s5, s2, 3")
    a("s_and_b32 s5, s5, 3")
    a("s_add_u32 s4, s4, s5")
    a("s_lshr_b32 s5, s2, 5")
    a("s_lshr_b32 s6, s3, 2")
    a("s_and_b32 s7, s3, 3")
    a("s_sub_u32 s12, 16, s5")
    a("s_cmp_eq_u32 s3, 4")
    a("s_cselect_b32 s40, 1, 0")
    a("s_cmp_eq_u32 s3, 5")
    a("s_cselect_b32 s40, 1, s40")
    a("v_and_b32 v%d, 31, v%d" % (THR, T1))
    a("v_lshrrev_b32 v%d, 5, v%d" % (T2, T1))
    a("v_lshlrev_b32 v%d, 2, v%d" % (T2, T2))
    a("v_sub_u32 v%d, v%d, v%d" % (THR, THR, T2))
    a("s_lshl_b32 s23, s7, 5")
    a("s_lshl_b32 s24, s6, 6")
    a("s_sub_u32 s23, s23, s24")
    a("v_add_u32 v%d, s23, v%d" % (THR, THR))
    a("v_mov_b32 v%d, 0xff800000" % NINF)
    a("s_lshl_b32 s23, s6, 16")
    a("v_add_u32 v%d, s23, v%d" % (KA, L16))
    a("v_add_u32 v%d, 0x8000, v%d" % (VA, KA))
    a("v_xor_b32 v%d, 0x4000, v%d" % (VA, VA))
    a("s_lshl_b32 s24, s7, 12")
    a("s_add_u32 s20, s23, s24")
    a("s_add_u32 s21, s20, 0x8000")
    a("s_lshl_b32 s24, s7, 13")
    a("s_add_u32 s24, s24, 0x20000")
    a("v_add_u32 v%d, s24, v%d" % (SCR, L16))
    a("s_lshl_b32 s18, s4, 19")
    a("s_lshl_b32 s23, s6, 14")
    a("s_add_u32 s18, s18, s23")
    a("s_lshl_b32 s23, s7, 12")
    a("s_add_u32 s18, s18, s23")
    a("s_add_u32 s19, s18, 0x%x" % WS_V)
    a("s_add_u32 s18, s18, 0x%x" % WS_K)
    a("s_mov_b32 s26, 0x%08x" % f32bits(2.0 ** (50 - BIAS)))
    a("s_mov_b32 s27, 0x%08x" % f32bits(BIAS))
    a("s_mov_b32 s38, 0x%08x" % f32bits(-BIAS))
    a("s_mov_b32 s39, 0x%08x" % f32bits(2.0 ** (-VSC)))
    a("s_waitcnt lgkmcnt(0)")
    srd(a, 8, 42, 43, 64 << 20)

    def dma_tile(seqreg_expr_add, is_v):
        a("s_add_u32 s23, s14, %d" % seqreg_expr_add)
        a("s_min_u32 s23, s23, 16")
        a("s_and_b32 s36, s23, 1")
        a("s_lshl_b32 s36, s36, 14")
        a("s_add_u32 m0, s36, s%d" % (21 if is_v else 20))
        a("s_cmp_ge_u32 s23, s12")
        a("s_cselect_b32 s24, s12, 0")
        a("s_sub_u32 s23, s23, s24")
        a("s_lshl_b32 s23, s23, 15")
        a("s_add_u32 s23, s23, s%d" % (19 if is_v else 18))
        for i in range(4):
            a("buffer_load_dwordx4 v%d, s[8:11], s23 offen offset:%d lds" % (L16, 1024 * i))

    def qload():
        a("s_lshl_b32 s23, s4, 6")
        a("s_lshl_b32 s24, s17, 2")
        a("s_add_u32 s23, s23, s24")
        a("s_add_u32 s23, s23, s7")
        a("s_lshl_b32 s23, s23, 13")
        a("s_add_u32 s24, s23, 4096")
        for ks in range(8):
            a("buffer_load_dwordx4 %s, v%d, s[8:11], s%d offen offset:%d" % (v(Q + 4 * ks, 4), L16, 23 if ks < 4 else 24, (ks % 4) * 1024))

    a("s_mov_b32 s14, 0")
    a("s_sub_u32 s17, 15, s5")
    a("s_mov_b32 s25, 0")
    qload()

    def dma_tile2(add, is_v):
        a("s_add_u32 s23, s14, %d" % add)
        a("s_and_b32 s36, s23, 1")
        a("s_lshl_b32 s36, s36, 14")
        a("s_add_u32 m0, s36, s%d" % (21 if is_v else 20))
        a("s_min_u32 s23, s23, 16")
        a("s_cmp_ge_u32 s23, s12")
        a("s_cselect_b32 s24, s12, 0")
        a("s_sub_u32 s23, s23, s24")
        a("s_lshl_b32 s23, s23, 15")
        a("s_add_u32 s23, s23, s%d" % (19 if is_v else 18))
        for i in range(4):
            a("buffer_load_dwordx4 v%d, s[8:11], s23 offen offset:%d lds" % (L16, 1024 * i))

    dma_tile2(0, False)
    dma_tile2(1, False)
    dma_tile2(0, True)
    a("s_waitcnt vmcnt(8)")

    fcnt = [0]

    def kread(i):
        a.lds("ds_read_b128 %s, v%d offset:%d" % (v(FR + 4 * (fcnt[0] % NR), 4), KA, i * 1024), ("f", fcnt[0])); fcnt[0] += 1

    def vread(i):
        a.lds("ds_read_b128 %s, v%d offset:%d" % (v(FR + 4 * (fcnt[0] % NR), 4), VA, i * 1024), ("f", fcnt[0])); fcnt[0] += 1

    def mphase(qk, pv, prefetched):
        seq = []
        if qk: seq += [("k", i) for i in range(16)]
        if pv: seq += [("v", i) for i in range(16)]
        fcnt[0] = prefetched
        if prefetched:
            a.lg = [("f", i) for i in range(prefetched)]
        issued = prefetched
        def issue():
            nonlocal issued
            if issued < len(seq):
                kind, i = seq[issued]
                (kread if kind == "k" else vread)(i)
                issued += 1
        while issued < min(D, len(seq)): issue()
        for n, (kind, i) in enumerate(seq):
            issue()
            a.wait_lg(("f", n))
            fr = v(FR + 4 * (n % NR), 4)
            if kind == "k":
                st, ks = i // 8, i % 8
                acc = v(S + 16 * st, 16)
                cc = v(NEGM, 16) if ks == 0 else acc
                a("v_mfma_f32_32x32x16_bf16 %s, %s, %s, %s" % (acc, fr, v(Q + 4 * ks, 4), cc))
            else:
                dt, k16 = i // 4, i % 4
                acc = v(O + 16 * dt, 16)
                a("v_mfma_f32_32x32x16_bf16 %s, %s, %s, %s" % (acc, fr, v(P + 4 * k16, 4), acc))

    def kprefetch():
        fcnt[0] = 0
        a.lg = []
        for i in range(D): kread(i)

    a.label("L_k2_qblock")
    a("s_add_u32 s16, s17, 1")
    a("s_mov_b32 s15, 0")
    for i in range(64): a("v_mov_b32 v%d, 0" % (O + i))
    for i in range(16): a("v_mov_b32 v%d, s38" % (NEGM + i))
    a("v_mov_b32 v%d, 0" % MU)
    a("v_mov_b32 v%d, 0" % LS)
    a("s_barrier")
    kprefetch()
    a("s_cmp_eq_u32 s6, 0")
    a("s_cbranch_scc1 L_k2_m0")
    a("s_barrier")
    a.label("L_k2_m0")
    a("s_add_u32 s41, s15, s40")
    a("s_cmp_eq_u32 s41, s16")
    a("s_cbranch_scc1 L_k2_mskip")
    mphase(True, False, D)
    a("s_branch L_k2_mdone")
    a.label("L_k2_mskip")
    a("s_waitcnt lgkmcnt(0)")
    a("s_branch L_k2_mdone")
    a.label("L_k2_pvonly")
    a("s_waitcnt lgkmcnt(0)")
    a.lg = []
    mphase(False, True, 0)
    a("s_branch L_k2_mdone")
    a.label("L_k2_loop")
    a("s_barrier")
    a("s_add_u32 s41, s15, s40")
    a("s_cmp_eq_u32 s41, s16")
    a("s_cbranch_scc1 L_k2_pvonly")
    mphase(True, True, D)
    a.label("L_k2_mdone")
    a("v_xor_b32 v%d, 0x4000, v%d" % (KA, KA))
    a("v_xor_b32 v%d, 0x4000, v%d" % (VA, VA))
    a("s_waitcnt vmcnt(4)")
    a("s_barrier")
    dma_tile2(2, False)
    dma_tile2(1, True)
    a("s_add_u32 s15, s15, 1")
    a("s_cmp_lg_u32 s15, s16")
    a("s_cbranch_scc1 L_k2_nomask")
    a("s_cmp_eq_u32 s40, 1")
    a("s_cbranch_scc1 L_k2_sskip")
    for r0 in range(0, 32, 4):
        for q in range(4):
            r = r0 + q
            st, jj, ii = r // 16, (r % 16) // 4, r % 4
            e = 32 * st + 8 * jj + ii
            a("v_cmp_lt_i32_e64 s[%d:%d], v%d, %d" % (28 + 2 * q, 29 + 2 * q, THR, e))
        for q in range(4):
            r = r0 + q
            a("v_cndmask_b32_e64 v%d, v%d, v%d, s[%d:%d]" % (S + r, S + r, NINF, 28 + 2 * q, 29 + 2 * q))
    a.label("L_k2_nomask")
    a("s_mov_b32 s22, 0xf149f2ca")
    a("s_cmp_eq_u32 s15, 1")
    a("s_cbranch_scc1 L_k2_rare")
    a.label("L_k2_exp")
    for p in range(16):
        e = E + 2 * (p % 4)
        a("v_exp_f32 v%d, v%d" % (e, S + 2 * p))
        a("v_exp_f32 v%d, v%d" % (e + 1, S + 2 * p + 1))
        if p >= 1:
            pe = E + 2 * ((p - 1) % 4)
            a("v_cvt_pk_bf16_f32 v%d, v%d, v%d" % (P + p - 1, pe, pe + 1))
            if p - 1 < 2:
                a("v_add_f32 v%d, v%d, v%d" % (SA + (p - 1), pe, pe + 1))
            else:
                a("v_add_f32 v%d, v%d, v%d" % (SA, SA, pe))
                a("v_add_f32 v%d, v%d, v%d" % (SA + 1, SA + 1, pe + 1))
    pe = E + 2 * (15 % 4)
    a("v_cvt_pk_bf16_f32 v%d, v%d, v%d" % (P + 15, pe, pe + 1))
    a("v_add_f32 v%d, v%d, v%d" % (SA, SA, pe))
    a("v_add_f32 v%d, v%d, v%d" % (SA + 1, SA + 1, pe + 1))
    a("v_add_f32 v%d, v%d, v%d" % (T1, SA, SA + 1))
    a("v_cmp_lt_f32 vcc, s26, v%d" % T1)
    a("s_mov_b32 s22, 0")
    a("s_cbranch_vccnz L_k2_rare")
    a("v_add_f32 v%d, v%d, v%d" % (LS, LS, T1))
    a("s_add_u32 s14, s14, 1")
    a("s_cmp_eq_u32 s15, s16")
    a("s_cbranch_scc1 L_k2_last")
    kprefetch()
    a("s_waitcnt vmcnt(8)")
    a("s_branch L_k2_loop")
    a.label("L_k2_rare")
    a("v_max3_f32 v%d, v%d, v%d, v%d" % (T1, S, S + 1, S + 2))
    a("v_max3_f32 v%d, v%d, v%d, v%d" % (T2, S + 3, S + 4, S + 5))
    for i in range(6, 30, 4):
        a("v_max3_f32 v%d, v%d, v%d, v%d" % (T1, T1, S + i, S + i + 1))
        a("v_max3_f32 v%d, v%d, v%d, v%d" % (T2, T2, S + i + 2, S + i + 3))
    a("v_max3_f32 v%d, v%d, v%d, v%d" % (T1, T1, S + 30, S + 31))
    a("v_max_f32 v%d, v%d, v%d" % (T1, T1, T2))
    a("v_mov_b32 v%d, v%d" % (T2, T1))
    a("v_permlane32_swap_b32 v%d, v%d" % (T1, T2))
    a("v_max_f32 v%d, v%d, v%d" % (T1, T1, T2))
    a("v_add_f32 v%d, s27, v%d" % (T1, T1))
    a("v_max_f32 v%d, s22, v%d" % (T1, T1))
    a("v_max_f32 v%d, 0, v%d" % (T2, T1))
    a("v_sub_f32 v%d, 0, v%d" % (T2, T2))
    a("v_exp_f32 v%d, v%d" % (T2, T2))
    a("v_add_f32 v%d, v%d, v%d" % (MU, MU, T1))
    for i in range(32): a("v_sub_f32 v%d, v%d, v%d" % (S + i, S + i, T1))
    for i in range(16): a("v_sub_f32 v%d, s38, v%d" % (NEGM + i, MU))
    a("v_mul_f32 v%d, v%d, v%d" % (LS, LS, T2))
    for i in range(64): a("v_mul_f32 v%d, v%d, v%d" % (O + i, O + i, T2))
    a("s_branch L_k2_exp")
    a.label("L_k2_sskip")
    a("s_cmp_lg_u32 s16, 1")
    a("s_cbranch_scc1 L_k2_sskip2")
    a("v_mov_b32 v%d, 0xf149f2ca" % MU)
    a.label("L_k2_sskip2")
    a("s_add_u32 s14, s14, 1")
    a("s_waitcnt vmcnt(8)")
    a("s_barrier")
    a("s_branch L_k2_lastdone")
    a.label("L_k2_last")
    a("s_waitcnt vmcnt(8)")
    a("s_barrier")
    a.lg = []
    mphase(False, True, 0)
    a.label("L_k2_lastdone")
    a("v_sub_u32 v%d, v%d, v%d" % (STA, VA, L16))
    a("v_lshrrev_b32 v%d, 2, v%d" % (T1, L16))
    a("v_add_u32 v%d, v%d, v%d" % (STA, STA, T1))
    a("s_lshl_b32 s23, s7, 9")
    a("v_add_u32 v%d, s23, v%d" % (STA, STA))
    a("v_xor_b32 v%d, 0x4000, v%d" % (VA, VA))
    a("v_xor_b32 v%d, 0x4000, v%d" % (VA, VA))
    a("v_mov_b32 v%d, v%d" % (T1, LS))
    a("v_permlane32_swap_b32 v%d, v%d" % (LS, T1))
    a("v_add_f32 v%d, v%d, v%d" % (LS, LS, T1))
    a("v_xor_b32 v%d, 0x10000, v%d" % (T5, STA))
    a("s_lshl_b32 s37, s17, 2")
    a("s_add_u32 s37, s37, s7")
    a("s_lshl_b32 s37, s37, 8")
    a("s_lshl_b32 s23, s4, 3")
    a("s_add_u32 s37, s37, s23")
    a("s_lshl_b32 s37, s37, 10")
    a("s_add_u32 s37, s37, 0x%x" % WS_C)
    a("s_mov_b32 s17, s5")
    a("s_barrier")
    qload()

    def finalize(own):
        a("v_max_f32 v%d, v%d, v%d" % (T1, MU, T3))
        a("v_sub_f32 v%d, v%d, v%d" % (T2, MU, T1))
        a("v_sub_f32 v%d, v%d, v%d" % (T3, T3, T1))
        a("v_exp_f32 v%d, v%d" % (T2, T2))
        a("v_exp_f32 v%d, v%d" % (T3, T3))
        a("v_mul_f32 v%d, v%d, v%d" % (T1, T2, LS))
        a("v_fmac_f32 v%d, v%d, v%d" % (T1, T3, T4))
        a("v_rcp_f32 v%d, v%d" % (T1, T1))
        a("v_mul_f32 v%d, s39, v%d" % (T1, T1))
        a("v_mul_f32 v%d, v%d, v%d" % (T2, T2, T1))
        a("v_mul_f32 v%d, v%d, v%d" % (T3, T3, T1))
        for i in range(32):
            a("v_mul_f32 v%d, v%d, v%d" % (own + i, own + i, T2))
            a("v_fmac_f32 v%d, v%d, v%d" % (own + i, SAVE + i, T3))
        for g in range(4):
            for i in range(4):
                a("v_cvt_pk_bf16_f32 v%d, v%d, v%d" % (own + 8 * g + i, own + 8 * g + 2 * i, own + 8 * g + 2 * i + 1))
            off = ((own - O) // 8 + g) * 1024
            if off >= 4096:
                if g == 0: a("s_add_u32 s37, s37, 4096")
                off -= 4096
            a("buffer_store_dwordx4 %s, v%d, s[8:11], s37 offen offset:%d %s" % (v(own + 8 * g, 4), L16, off, stf))

    a("s_cmp_eq_u32 s6, 0")
    a("s_cbranch_scc0 L_k2_mergeB")
    a("ds_write_b32 v%d, v%d" % (STA, MU))
    a("ds_write_b32 v%d, v%d offset:256" % (STA, LS))
    for i in range(8):
        a("ds_write_b128 v%d, %s offset:%d" % (SCR, v(O + 32 + 4 * i, 4), 1024 * i))
    a("s_waitcnt lgkmcnt(0)")
    a("s_barrier")
    a("s_barrier")
    a("ds_read_b32 v%d, v%d" % (T3, T5))
    a("ds_read_b32 v%d, v%d offset:256" % (T4, T5))
    for i in range(8):
        a("ds_read_b128 %s, v%d offset:%d" % (v(SAVE + 4 * i, 4), SCR, 1024 * i))
    a("s_waitcnt lgkmcnt(0)")
    finalize(O)
    a("s_branch L_k2_next")
    a.label("L_k2_mergeB")
    a("ds_write_b32 v%d, v%d" % (STA, MU))
    a("ds_write_b32 v%d, v%d offset:256" % (STA, LS))
    a("ds_read_b32 v%d, v%d" % (T3, T5))
    a("ds_read_b32 v%d, v%d offset:256" % (T4, T5))
    for i in range(8):
        a("ds_read_b128 %s, v%d offset:%d" % (v(SAVE + 4 * i, 4), SCR, 1024 * i))
    a("s_waitcnt lgkmcnt(0)")
    for i in range(8):
        a("ds_write_b128 v%d, %s offset:%d" % (SCR, v(O + 4 * i, 4), 1024 * i))
    a("s_waitcnt lgkmcnt(0)")
    a("s_barrier")
    finalize(O + 32)
    a.label("L_k2_next")
    a("s_add_u32 s25, s25, 1")
    a("s_cmp_eq_u32 s25, 2")
    a("s_cbranch_scc1 L_k2_end")
    a("s_waitcnt vmcnt(4)")
    a("s_branch L_k2_qblock")
    a.label("L_k2_end")
    a("s_endpgm")
    return a.lines
```

```python
from asmlib import *
from k1 import srd, f32bits, WS_Q, WS_K, WS_V, WS_C, WS_WO, WS_END
import k4

K3_LDS = 65536
MAPB = 1
NRK = 3
PRIO = 0


def gen_k3_body(a, wg="s2"):
    ACC, FR = 0, 64
    VL16, VRD, VO, VTMP = 64 + 16 * NRK, 65 + 16 * NRK, 66 + 16 * NRK, 68 + 16 * NRK
    if PRIO: a("s_setprio %d" % PRIO)
    a("s_load_dwordx2 s[42:43], s[0:1], 136")
    a("s_load_dwordx2 s[44:45], s[0:1], 120")
    a("v_lshrrev_b32 v%d, 6, v0" % VTMP)
    a("v_readfirstlane_b32 s3, v%d" % VTMP)
    a("v_and_b32 v%d, 63, v0" % VTMP)
    a("s_and_b32 s22, %s, 7" % wg)
    a("s_lshr_b32 s23, %s, 3" % wg)
    a("s_lshr_b32 s4, s22, %d" % MAPB)
    a("s_lshl_b32 s4, s4, %d" % (2 + MAPB))
    a("s_and_b32 s24, s23, %d" % ((4 << MAPB) - 1))
    a("s_add_u32 s4, s4, s24")
    a("s_and_b32 s5, s22, %d" % ((1 << MAPB) - 1))
    a("s_lshl_b32 s5, s5, %d" % (3 - MAPB))
    a("s_lshr_b32 s24, s23, %d" % (2 + MAPB))
    a("s_add_u32 s5, s5, s24")
    L = VTMP; T1 = VTMP + 1; T2 = VTMP + 2; T3 = VTMP + 3
    a("v_lshlrev_b32 v%d, 4, v%d" % (VL16, L))
    a("v_and_b32 v%d, 31, v%d" % (T1, L))
    a("v_lshlrev_b32 v%d, 11, v%d" % (T1, T1))
    a("v_lshrrev_b32 v%d, 5, v%d" % (T2, L))
    a("v_lshl_add_u32 v%d, v%d, 4, v%d" % (VO, T2, T1))
    a("s_waitcnt lgkmcnt(0)")
    srd(a, 12, 42, 43, WS_END)
    srd(a, 16, 44, 45, 2048 * 1024 * 2)
    a("s_lshl_b32 s21, s3, 10")
    a("s_lshl_b32 s6, s4, 19")
    a("s_add_u32 s6, s6, s21")
    a("s_add_u32 s6, s6, 0x%x" % WS_C)
    a("s_add_u32 s7, s6, 0x40000")
    a("s_lshl_b32 s8, s5, 19")
    a("s_add_u32 s8, s8, s21")
    a("s_add_u32 s8, s8, 0x%x" % WS_WO)
    a("s_add_u32 s9, s8, 0x40000")

    def load(j):
        for q in range(4):
            if j > 0: a("s_add_u32 s%d, s%d, 8192" % (6 + q, 6 + q))
            a.vmem("buffer_load_dwordx4 %s, v%d, s[12:15], s%d offen" % (v(FR + 16 * (j % NRK) + 4 * q, 4), VL16, 6 + q), ("a", j))

    for j in range(NRK - 1): load(j)
    for j in range(32):
        if j + NRK - 1 < 32: load(j + NRK - 1)
        a.wait_vm(("a", j))
        fr = FR + 16 * (j % NRK)
        for mt2 in range(2):
            for q in range(2):
                acc = v(ACC + 16 * (2 * mt2 + q), 16)
                a("v_mfma_f32_32x32x16_bf16 %s, %s, %s, %s" % (acc, v(fr + 8 + 4 * mt2, 4), v(fr + 4 * q, 4), "0" if j == 0 else acc))
    a("s_and_b32 s22, s3, 3")
    a("s_lshl_b32 s22, s22, 14")
    a("v_add_u32 v%d, s22, v%d" % (VRD, VL16))
    a("s_cmp_lt_u32 s3, 4")
    a("s_cbranch_scc1 L_k3_r1")
    for i in range(16):
        a("ds_write_b128 v%d, %s offset:%d" % (VRD, v(ACC + 4 * i, 4), 1024 * i))
    a("s_waitcnt lgkmcnt(0)")
    a("s_barrier")
    a("s_barrier")
    a("s_branch L_k3_r2")
    a.label("L_k3_r1")
    a("s_barrier")
    for half in range(2):
        for i in range(8):
            a("ds_read_b128 %s, v%d offset:%d" % (v(64 + 4 * i, 4), VRD, 1024 * (8 * half + i)))
        a("s_waitcnt lgkmcnt(0)")
        for i in range(32):
            a("v_add_f32 v%d, v%d, v%d" % (ACC + 32 * half + i, ACC + 32 * half + i, 64 + i))
    for i in range(16):
        a("ds_write_b128 v%d, %s offset:%d" % (VRD, v(ACC + 4 * i, 4), 1024 * i))
    a("s_waitcnt lgkmcnt(0)")
    a("s_barrier")
    a.label("L_k3_r2")
    a("s_lshl_b32 s22, s3, 11")
    a("v_add_u32 v%d, s22, v%d" % (VRD, VL16))
    for w in range(4):
        for q in range(2):
            a("ds_read_b128 %s, v%d offset:%d" % (v(64 + 8 * w + 4 * q, 4), VRD, w * 16384 + q * 1024))
    a("s_waitcnt lgkmcnt(0)")
    for step in (16, 8):
        for i in range(step):
            a("v_add_f32 v%d, v%d, v%d" % (64 + i, 64 + i, 64 + step + i))
    for q in range(2):
        a("v_cvt_pk_bf16_f32 v%d, v%d, v%d" % (0 + 2 * q, 64 + 4 * q, 65 + 4 * q))
        a("v_cvt_pk_bf16_f32 v%d, v%d, v%d" % (1 + 2 * q, 66 + 4 * q, 67 + 4 * q))
    a("v_permlane32_swap_b32 v0, v2")
    a("v_permlane32_swap_b32 v1, v3")
    a("s_lshr_b32 s22, s3, 1")
    a("s_and_b32 s23, s22, 1")
    a("s_lshl_b32 s23, s23, 16")
    a("s_lshl_b32 s24, s4, 17")
    a("s_add_u32 s23, s23, s24")
    a("s_lshr_b32 s22, s22, 1")
    a("s_lshl_b32 s22, s22, 6")
    a("s_add_u32 s23, s23, s22")
    a("s_and_b32 s22, s3, 1")
    a("s_lshl_b32 s22, s22, 5")
    a("s_add_u32 s23, s23, s22")
    a("s_lshl_b32 s22, s5, 7")
    a("s_add_u32 s23, s23, s22")
    a("buffer_store_dwordx4 v[0:3], v%d, s[16:19], s23 offen" % VO)


def gen_k3(name):
    a = Asm()
    a.label(name)
    a("s_cmp_ge_u32 s2, 256")
    a("s_cbranch_scc1 L_k3_end")
    gen_k3_body(a)
    a.label("L_k3_end")
    a("s_endpgm")
    return a.lines


def gen_k34(name, ssm_first=True):
    a = Asm()
    a.label(name)
    a("s_cmp_ge_u32 s2, 512")
    a("s_cbranch_scc1 L_k34_end")
    a("s_and_b32 s60, s2, 255")
    a("s_cmp_ge_u32 s2, 256")
    a("s_cbranch_scc1 L_k34_second")
    (k4.gen_ssm_body if ssm_first else gen_k3_body)(a, "s60")
    a("s_endpgm")
    a.label("L_k34_second")
    a.vm = []; a.lg = []
    (gen_k3_body if ssm_first else k4.gen_ssm_body)(a, "s60")
    a.label("L_k34_end")
    a("s_endpgm")
    return a.lines
```

```python
from asmlib import *
from k1 import srd, f32bits
import math

CSTR = 4160
UCH = 8 * CSTR
L_KB = 0
L_R = 12288
L_PAR = L_R
L_TAB = L_R + 4096
YSTR = 144
YW = 64 * YSTR
L_Y = 0
K4_LDS = max(L_R + 2 * UCH + 64, 8 * YW)


def gen_ssm_body(a, wgreg="s2"):
    L, T1, T2, T3, T4 = 1, 2, 3, 4, 5
    UR = 8
    a("s_load_dwordx4 s[32:35], s[0:1], 48")
    a("s_load_dwordx4 s[36:39], s[0:1], 64")
    a("s_load_dwordx4 s[40:43], s[0:1], 80")
    a("s_load_dwordx4 s[44:47], s[0:1], 96")
    a("s_load_dwordx4 s[48:51], s[0:1], 112")
    a("v_lshrrev_b32 v%d, 6, v0" % T1)
    a("v_readfirstlane_b32 s3, v%d" % T1)
    a("v_and_b32 v%d, 63, v0" % L)
    a("s_and_b32 s59, %s, 7" % wgreg)
    a("s_lshl_b32 s59, s59, 5")
    a("s_lshr_b32 s4, %s, 3" % wgreg)
    a("s_add_u32 s59, s59, s4")
    wgreg = "s59"
    a("s_lshl_b32 s4, %s, 2" % wgreg)
    a("s_waitcnt lgkmcnt(0)")
    a("s_load_dword s5, s[46:47], s4")
    a("s_load_dword s6, s[48:49], s4")
    srd(a, 8, 32, 33, 2048 * 512 * 2)
    srd(a, 12, 50, 51, 2048 * 1024 * 2)
    a("v_mov_b32 v16, 0"); a("v_mov_b32 v17, 0"); a("v_mov_b32 v18, 0"); a("v_mov_b32 v19, 0")
    a("s_cmp_ge_u32 s3, 4")
    a("s_cbranch_scc1 L_ssm_nopar0")
    a("v_lshlrev_b32 v%d, 1, v0" % T2)
    a("s_lshl_b32 s7, %s, 9" % wgreg)
    srcs = [(34, 35), (36, 37), (38, 39), (40, 41), (42, 43), (44, 45)]
    for i, (lo, hi) in enumerate(srcs):
        srd(a, 16, lo, hi, 512 * 128 * 2)
        a("buffer_load_ushort v%d, v%d, s[16:19], s7 offen" % (20 + i, T2))
    a.label("L_ssm_nopar0")
    a("v_lshlrev_b32 v%d, 10, v0" % T1)
    for r in range(4):
        a("s_add_u32 s7, s4, 0x%x" % (r * 512 * 1024))
        a("buffer_load_dword v%d, v%d, s[8:11], s7 offen" % (UR + r, T1))
    a("s_cmp_ge_u32 s3, 4")
    a("s_cbranch_scc0 L_ssm_par")
    a("v_subrev_u32 v%d, 256, v0" % T2)
    a("v_lshrrev_b32 v%d, 5, v%d" % (T1, T2))
    a("v_mul_u32_u24 v%d, 1536, v%d" % (T1, T1))
    a("v_and_b32 v%d, 31, v%d" % (T2, T2))
    a("v_lshl_add_u32 v%d, v%d, 4, v%d" % (T1, T2, T1))
    a("ds_write_b128 v%d, v[16:19] offset:%d" % (T1, L_KB))
    a("s_branch L_ssm_nopar")
    a.label("L_ssm_par")
    a("s_waitcnt lgkmcnt(0)")
    a("s_lshl_b32 s16, s5, 16")
    a("s_and_b32 s17, s5, 0xffff0000")
    a("s_cmp_lt_u32 s3, 2")
    a("s_cselect_b32 s16, s16, s17")
    a("v_mov_b32 v%d, 0x%08x" % (T3, f32bits(math.log2(math.e))))
    a("v_mul_f32 v%d, s16, v%d" % (T3, T3))
    a("v_exp_f32 v%d, v%d" % (T3, T3))
    a("v_cvt_pk_bf16_f32 v%d, v%d, v%d" % (T3, T3, T3))
    a("v_lshlrev_b32 v%d, 16, v%d" % (T3, T3))
    a("s_waitcnt vmcnt(4)")
    for i in range(6): a("v_lshlrev_b32 v%d, 16, v%d" % (20 + i, 20 + i))
    a("v_mul_f32 v28, v%d, v20" % T3)
    a("v_mul_f32 v28, 0x%08x, v28" % f32bits(math.log2(math.e)))
    a("v_mul_f32 v29, v%d, v21" % T3)
    a("v_mul_f32 v29, 0x%08x, v29" % f32bits(1.0 / (2 * math.pi)))
    a("v_mul_f32 v22, v%d, v22" % T3)
    a("v_mul_f32 v23, v%d, v23" % T3)
    a("v_mul_f32 v30, v24, v22")
    a("v_fma_f32 v30, -v25, v23, v30")
    a("v_mul_f32 v31, v24, v23")
    a("v_fmac_f32 v31, v25, v22")
    a("v_lshlrev_b32 v%d, 4, v0" % T1)
    a("ds_write_b128 v%d, v[28:31] offset:%d" % (T1, L_PAR))
    a.label("L_ssm_nopar")
    ACC = 64
    FB, FH, PA = 12, 13, 20
    a("v_and_b32 v%d, 15, v%d" % (T1, L))
    a("v_lshlrev_b32 v%d, 3, v%d" % (T2, T1))
    a("v_cvt_f32_u32 v%d, v%d" % (FB, T2))
    a("v_lshrrev_b32 v%d, 3, v%d" % (T2, T1))
    a("v_and_b32 v%d, 7, v%d" % (T3, T1))
    a("v_lshl_add_u32 v%d, v%d, 7, v%d" % (T2, T2, T3))
    a("v_cvt_f32_u32 v%d, v%d" % (FH, T2))
    a("v_lshl_add_u32 v%d, v%d, 1, 16" % (T2, T1))
    a("v_lshlrev_b32 v%d, 2, v%d" % (T3, T1))
    a("v_cmp_gt_u32 vcc, 8, v%d" % T1)
    a("v_cndmask_b32 v%d, v%d, v%d, vcc" % (T2, T3, T2))
    a("v_lshrrev_b32 v%d, 3, v%d" % (T3, T2))
    a("v_and_b32 v%d, 7, v%d" % (T2, T2))
    a("v_lshl_add_u32 v%d, v%d, 7, v%d" % (T2, T3, T2))
    a("v_cvt_f32_u32 v%d, v%d" % (FH + 1, T2))
    a("v_min_u32 v%d, 8, v%d" % (T2, T1))
    a("v_add_u32 v%d, 8, v%d" % (T2, T2))
    a("v_lshlrev_b32 v%d, 7, v%d" % (T2, T2))
    a("v_cvt_f32_u32 v%d, v%d" % (FH + 2, T2))
    a("v_lshrrev_b32 v%d, 4, v%d" % (T1, L))
    a("s_lshl_b32 s7, s3, 9")
    a("v_lshlrev_b32 v%d, 4, v%d" % (T1, T1))
    a("v_add_u32 v%d, s7, v%d" % (PA, T1))
    for i in range(12): a("v_mov_b32 v%d, 0" % (ACC + i))
    a("s_waitcnt lgkmcnt(0)")
    a("s_barrier")
    for t in range(8):
        a("ds_read_b128 v[%d:%d], v%d offset:%d" % (96 + 4 * t, 99 + 4 * t, PA, L_PAR + 64 * t))
    a("s_waitcnt lgkmcnt(0)")
    for t in range(8):
        pa, pb, wr, wi = 96 + 4 * t, 97 + 4 * t, 98 + 4 * t, 99 + 4 * t
        o = 32 + 8 * (t % 2)
        for q in range(4):
            f = FB if q == 0 else FH + q - 1
            x = 48 + 4 * q
            a("v_mul_f32 v%d, v%d, v%d" % (x, pa, f))
            a("v_mul_f32 v%d, v%d, v%d" % (x + 1, pb, f))
            a("v_exp_f32 v%d, v%d" % (x, x))
            a("v_fract_f32 v%d, v%d" % (x + 1, x + 1))
            a("v_cos_f32 v%d, v%d" % (x + 2, x + 1))
            a("v_sin_f32 v%d, v%d" % (x + 3, x + 1))
        a("v_mul_f32 v%d, v48, v50" % o)
        a("v_mul_f32 v%d, v48, v51" % (o + 1))
        for q in range(1, 4):
            x = 48 + 4 * q
            ar, ai = o + 2 * q, o + 2 * q + 1
            a("v_mul_f32 v%d, v%d, v%d" % (ar, wr, x + 2))
            a("v_mul_f32 v%d, v%d, v%d" % (ai, wr, x + 3))
            a("v_fma_f32 v%d, -v%d, v%d, v%d" % (ar, wi, x + 3, ar))
            a("v_fmac_f32 v%d, v%d, v%d" % (ai, wi, x + 2))
            a("v_mul_f32 v%d, v%d, v%d" % (ar, x, ar))
            a("v_mul_f32_e64 v%d, -v%d, v%d" % (ai, x, ai))
        for part in range(2):
            for q in range(1, 4):
                acc = v(ACC + 4 * (q - 1), 4)
                a("v_mfma_f32_16x16x4_f32 %s, v%d, v%d, %s" % (acc, o + 2 * q + part, o + part, acc))
    a("v_and_b32 v%d, 15, v%d" % (T1, L))
    a("v_lshrrev_b32 v%d, 4, v%d" % (T2, L))
    a("v_lshl_add_u32 v%d, v%d, 6, v%d" % (T1, T2, T1))
    a("v_lshlrev_b32 v%d, 2, v%d" % (T1, T1))
    a("s_mul_i32 s7, s3, 3072")
    a("v_add_u32 v%d, s7, v%d" % (T1, T1))
    for r in range(3):
        for i in range(4):
            a("ds_write_b32 v%d, v%d offset:%d" % (T1, ACC + 4 * r + i, L_TAB + r * 1024 + i * 64))
    a("v_and_b32 v%d, 255, v0" % T2)
    a("v_lshrrev_b32 v%d, 8, v0" % T1)
    a("v_mul_u32_u24 v%d, 12288, v%d" % (T3, T1))
    for e in range(8):
        x = 32 + e; y = 40 + e; z = 48 + e
        a("v_lshl_add_u32 v%d, v%d, 3, %d" % (x, T2, e))
        a("v_cvt_f32_u32 v%d, v%d" % (x, x))
        a("v_cvt_pk_bf16_f32 v%d, v%d, v%d" % (x, x, x))
        a("v_lshlrev_b32 v%d, 16, v%d" % (x, x))
        a("v_cvt_u32_f32 v%d, v%d" % (y, x))
        a("v_lshrrev_b32 v%d, 23, v%d" % (x, x))
        a("v_subrev_u32 v%d, 134, v%d" % (x, x))
        a("v_med3_i32 v%d, v%d, 0, 3" % (x, x))
        a("v_lshrrev_b32 v%d, 7, v%d" % (z, y))
        a("v_lshlrev_b32 v%d, 3, v%d" % (z, z))
        a("v_and_or_b32 v%d, v%d, 7, v%d" % (z, y, z))
        a("v_lshrrev_b32 v%d, v%d, v%d" % (z, x, z))
        a("v_lshl_add_u32 v%d, v%d, 3, v%d" % (z, x, z))
        a("v_bfe_u32 v%d, v%d, 3, 4" % (y, y))
        a("v_lshl_add_u32 v%d, v%d, 4, v%d" % (z, z, y))
        a("v_lshl_add_u32 v%d, v%d, 2, v%d" % (x, z, T3))
    a("s_waitcnt lgkmcnt(0)")
    a("s_barrier")
    for e in range(8):
        for w in range(4):
            a("ds_read_b32 v%d, v%d offset:%d" % (64 + 4 * e + w, 32 + e, L_TAB + w * 3072))
        if e in (2, 5): a("s_waitcnt lgkmcnt(4)")
    a("s_waitcnt lgkmcnt(0)")
    for e in range(8):
        b = 64 + 4 * e
        a("v_add_f32 v%d, v%d, v%d" % (b, b, b + 1))
        a("v_add_f32 v%d, v%d, v%d" % (b + 2, b + 2, b + 3))
        a("v_add_f32 v%d, v%d, v%d" % (b, b, b + 2))
    for i in range(4):
        a("v_cvt_pk_bf16_f32 v%d, v%d, v%d" % (32 + i, 64 + 8 * i, 68 + 8 * i))
    a("v_and_b32 v%d, 3, v%d" % (T3, T2))
    a("v_mul_u32_u24 v%d, 1536, v%d" % (T3, T3))
    a("v_mul_u32_u24 v%d, 6144, v%d" % (T4, T1))
    a("v_add_u32 v%d, v%d, v%d" % (T3, T3, T4))
    a("v_lshrrev_b32 v%d, 2, v%d" % (T4, T2))
    a("v_lshl_add_u32 v%d, v%d, 4, v%d" % (T3, T4, T3))
    a("ds_write_b128 v%d, v[32:35] offset:%d" % (T3, L_KB + 512))
    a("s_waitcnt lgkmcnt(0)")
    a("s_barrier")
    a("s_waitcnt vmcnt(0)")
    a("v_sub_u32 v%d, 2047, v0" % T3)
    a("v_lshlrev_b32 v%d, 1, v%d" % (T3, T3))
    a("v_add_u32 v%d, %d, v%d" % (T3, L_R - 3072, T3))
    for r in range(4):
        a("ds_write_b16 v%d, v%d offset:%d" % (T3, UR + r, (3 - r) * 1024))
        a("ds_write_b16_d16_hi v%d, v%d offset:%d" % (T3, UR + r, UCH + (3 - r) * 1024))
    a("v_mul_u32_u24 v%d, %d, v%d" % (T4, UCH, T1))
    a("v_lshl_add_u32 v%d, v%d, 4, v%d" % (T4, T2, T4))
    a("v_add_u32 v%d, %d, v%d" % (T4, L_R, T4))
    a("v_cmp_gt_u32 vcc, 4, v%d" % T2)
    a("s_and_saveexec_b64 s[16:17], vcc")
    a("s_cbranch_execz L_ssm_noext")
    for sft in range(0, 8):
        a("ds_write_b128 v%d, v[16:19] offset:%d" % (T4, 4096 + sft * CSTR))
    a.label("L_ssm_noext")
    a("s_mov_b64 exec, s[16:17]")
    a("s_waitcnt lgkmcnt(0)")
    a("s_barrier")
    a("ds_read_b128 v[32:35], v%d" % T4)
    a("ds_read_b128 v[36:39], v%d offset:16" % T4)
    a("s_waitcnt lgkmcnt(0)")
    for sft in range(1, 8):
        d = 40 + 4 * (sft % 4)
        for k in range(4):
            w = 32 + sft // 2 + k
            if sft % 2 == 0:
                a("v_mov_b32 v%d, v%d" % (d + k, w))
            else:
                a("v_alignbyte_b32 v%d, v%d, v%d, 2" % (d + k, w + 1, w))
        a("ds_write_b128 v%d, %s offset:%d" % (T4, v(d, 4), sft * CSTR))
    AA, BA = 12, 13
    a("v_and_b32 v%d, 31, v%d" % (T1, L))
    a("v_lshrrev_b32 v%d, 5, v%d" % (T2, L))
    a("v_sub_u32 v%d, 7, v%d" % (T3, T1))
    a("v_and_b32 v%d, 7, v%d" % (T3, T3))
    a("v_mul_u32_u24 v%d, %d, v%d" % (AA, CSTR, T3))
    a("v_lshrrev_b32 v%d, 3, v%d" % (T3, T1))
    a("v_sub_u32 v%d, v%d, v%d" % (T3, T2, T3))
    a("v_lshl_add_u32 v%d, v%d, 4, v%d" % (AA, T3, AA))
    a("s_lshr_b32 s7, s3, 2")
    a("s_and_b32 s17, s3, 3")
    a("s_mul_i32 s16, s7, %d" % UCH)
    a("s_lshl_b32 s18, s17, 6")
    a("s_sub_u32 s16, s16, s18")
    a("s_add_u32 s16, s16, %d" % (L_R + 4080 - 256 * 15))
    a("v_add_u32 v%d, s16, v%d" % (AA, AA))
    a("v_mul_u32_u24 v%d, 1536, v%d" % (BA, T2))
    a("v_lshl_add_u32 v%d, v%d, 4, v%d" % (BA, T1, BA))
    a("s_mul_i32 s16, s7, 6144")
    a("s_lshl_b32 s18, s17, 4")
    a("s_sub_u32 s16, s16, s18")
    a("s_add_u32 s16, s16, %d" % (L_KB + 1024 - 64 * 15))
    a("v_add_u32 v%d, s16, v%d" % (BA, BA))
    a("v_subrev_u32 v%d, 512, v%d" % (BA + 1, BA))
    a("s_waitcnt lgkmcnt(0)")
    a("s_barrier")
    a.lg = []
    seq = []
    for mm in range(16):
        for ks in range(2):
            seq.append(("a", mm, ks))
            seq.append(("b", mm, ks, 1))
            if mm < 8: seq.append(("b", mm, ks, 0))
    NRG = 10; DD = 6; RB = 72
    issued = [0]

    def issue():
        if issued[0] >= len(seq): return
        it = seq[issued[0]]
        reg = RB + 4 * (issued[0] % NRG)
        mm, ks = it[1], it[2]
        if it[0] == "a":
            a.lds("ds_read_b128 %s, v%d offset:%d" % (v(reg, 4), AA, 256 * (15 - mm) + 32 * ks), ("c", issued[0]))
        else:
            a.lds("ds_read_b128 %s, v%d offset:%d" % (v(reg, 4), BA + (1 - it[3]), 64 * (15 - mm) + 3072 * ks), ("c", issued[0]))
        issued[0] += 1
    for _ in range(DD): issue()
    areg = None
    first = {0: True, 1: True}
    for n, it in enumerate(seq):
        issue()
        reg = RB + 4 * (n % NRG)
        if it[0] == "a":
            areg = reg
        else:
            a.wait_lg(("c", n))
            acc = v(32 + 16 * it[3], 16)
            a("v_mfma_f32_32x32x16_bf16 %s, %s, %s, %s" % (acc, v(areg, 4), v(reg, 4), "0" if first[it[3]] else acc))
            first[it[3]] = False
    a("s_barrier")
    a("v_mul_u32_u24 v%d, %d, v%d" % (T3, YSTR, T1))
    a("v_lshl_add_u32 v%d, v%d, 4, v%d" % (T3, T2, T3))
    a("s_mul_i32 s16, s3, %d" % YW)
    a("v_add_u32 v%d, s16, v%d" % (T3, T3))
    for nt in range(2):
        for j in range(4):
            a("ds_write_b128 v%d, %s offset:%d" % (T3, v(32 + 16 * nt + 4 * j, 4), nt * 32 * YSTR + j * 32))
    a("s_waitcnt lgkmcnt(0)")
    a("s_barrier")
    a("v_lshrrev_b32 v%d, 5, v0" % T1)
    a("v_mul_u32_u24 v%d, %d, v%d" % (T1, YSTR, T1))
    a("v_and_b32 v%d, 31, v0" % T2)
    a("v_lshl_add_u32 v%d, v%d, 2, v%d" % (T1, T2, T1))
    a("v_add_u32 v%d, %d, v%d" % (T2, 4 * YW, T1))
    for r in range(4):
        for ch in range(2):
            for w in range(4):
                a("ds_read_b32 v%d, v%d offset:%d" % (32 + 8 * r + 4 * ch + w, T1 if ch == 0 else T2, w * YW + r * 16 * YSTR))
        a("s_waitcnt lgkmcnt(4)")
    a("s_lshl_b32 s16, s6, 16")
    a("s_and_b32 s17, s6, 0xffff0000")
    a("v_lshlrev_b32 v%d, 11, v0" % T1)
    a("s_waitcnt lgkmcnt(0)")
    for r in range(4):
        y = 32 + 8 * r
        for ch in range(2):
            b = y + 4 * ch
            a("v_add_f32 v%d, v%d, v%d" % (b, b, b + 1))
            a("v_add_f32 v%d, v%d, v%d" % (b + 2, b + 2, b + 3))
            a("v_add_f32 v%d, v%d, v%d" % (b, b, b + 2))
        a("v_cvt_pk_bf16_f32 v%d, v%d, v%d" % (y, y, y + 4))
        a("v_lshlrev_b32 v64, 16, v%d" % (UR + r))
        a("v_and_b32 v65, 0xffff0000, v%d" % (UR + r))
        a("v_mul_f32 v64, s16, v64")
        a("v_mul_f32 v65, s17, v65")
        a("v_cvt_pk_bf16_f32 v64, v64, v65")
        a("v_lshlrev_b32 v66, 16, v%d" % y)
        a("v_and_b32 v67, 0xffff0000, v%d" % y)
        a("v_lshlrev_b32 v65, 16, v64")
        a("v_and_b32 v64, 0xffff0000, v64")
        a("v_add_f32 v66, v66, v65")
        a("v_add_f32 v67, v67, v64")
        a("v_cvt_pk_bf16_f32 v%d, v66, v67" % (68 + r))
        a("s_add_u32 s18, s4, 0x%x" % (r * 512 * 2048 + 1024))
        a("buffer_store_dword v%d, v%d, s[12:15], s18 offen" % (68 + r, T1))


def gen_k4(name):
    a = Asm()
    a.label(name)
    a("s_cmp_ge_u32 s2, 256")
    a("s_cbranch_scc1 L_k4_end")
    gen_ssm_body(a)
    a.label("L_k4_end")
    a("s_endpgm")
    return a.lines
```

```python
import gen, k1, k2, k3, k4
def rt(base, slot, vr):
    fin = ["    s_waitcnt vmcnt(0)", "    s_memrealtime s[64:65]", "    s_waitcnt lgkmcnt(0)",
           "    v_mov_b32 v%d, 0" % vr, "    v_writelane_b32 v%d, s78, 0" % vr, "    v_writelane_b32 v%d, s64, 1" % vr,
           "    s_mov_b32 s72, s70", "    s_and_b32 s73, s71, 0xffff", "    s_mov_b32 s74, 0x10000000", "    s_mov_b32 s75, 0x20000",
           "    s_lshl_b32 s46, s2, 3", "    s_add_u32 s46, s46, s3", "    s_lshl_b32 s46, s46, 8", "    s_add_u32 s46, s46, 0x%x" % ((100 + slot) << 20),
           "    v_mbcnt_lo_u32_b32 v%d, -1, 0" % (vr+1), "    v_mbcnt_hi_u32_b32 v%d, -1, v%d" % (vr+1, vr+1), "    v_lshlrev_b32 v%d, 2, v%d" % (vr+1, vr+1), "    buffer_store_dword v%d, v%d, s[72:75], s46 offen" % (vr, vr+1), "    s_endpgm"]
    out = []
    first_exit = None
    for i, l in enumerate(base):
        if i == 2:
            tgt = l.split()[-1]
            out.append(l.replace(tgt, tgt + "_x"))
            out += ["    s_load_dwordx2 s[70:71], s[0:1], 136", "    s_memrealtime s[78:79]", "    s_waitcnt lgkmcnt(0)"]
            first_exit = tgt + "_x"
            continue
        if l.strip() == "s_endpgm":
            out += fin
            continue
        out.append(l)
    out += [first_exit + ":", "    s_endpgm"]
    return out
gen.build([("k1_proj_kernel", rt(k1.gen_k1("k1_proj_kernel"), 0, 254), 256, 512, k1.K1_LDS, 256),
          ("k2_attn_kernel", rt(k2.gen_k2("k2_attn_kernel"), 1, 254), 256, 512, k2.K2_LDS, 256),
          ("k3_out_kernel", rt(k3.gen_k34("k3_out_kernel"), 2, 126), 512, 512, max(k3.K3_LDS, k4.K4_LDS), 128)], out="var_a.s")
```

```python
from asmlib import *
import math, struct

WS_Q = 0
WS_K = 16 << 20
WS_V = 32 << 20
WS_C = 48 << 20
WS_WO = 64 << 20
WS_UT = 68 << 20
WS_END = 72 << 20
VSC = 0
PFN = 2
PFS = 0
PFSKIP = 0


def srd(a, d, lo, hi, nbytes):
    a("s_mov_b32 s%d, s%d" % (d, lo))
    a("s_and_b32 s%d, s%d, 0xffff" % (d + 1, hi))
    a("s_mov_b32 s%d, 0x%x" % (d + 2, nbytes))
    a("s_mov_b32 s%d, 0x20000" % (d + 3))


def f32bits(x):
    return struct.unpack("<I", struct.pack("<f", x))[0]


K1_LDS = 65536 + 8 * 12288
XSCHED = {-1: [0, 1], 0: [2, 3], 1: [4, 5], 2: [6, 7], 4: [8], 5: [9], 6: [10], 7: [11], 8: [12], 9: [13, 14], 10: [15]}


def gen_k1(name, nox=False, notr=False, nodma=False, nost=False, stf="sc1", stamp=False, pref=True):
    a = Asm()
    XF, ACC, WF = 0, 128, 192
    VXD, VW, VT, VL16, VXR, VTMP = 224, 225, 226, 228, 229, 236
    NS = 4; D = 6; NR = 8
    XBASE = 65536
    a.label(name)
    a("s_cmp_ge_u32 s2, 256")
    a("s_cbranch_scc1 L_k1_end")
    a("s_load_dwordx4 s[32:35], s[0:1], 0")
    a("s_load_dwordx4 s[36:39], s[0:1], 16")
    a("s_load_dwordx2 s[40:41], s[0:1], 32")
    a("s_load_dwordx2 s[42:43], s[0:1], 136")
    a("s_load_dwordx2 s[52:53], s[0:1], 40")
    a("s_load_dwordx2 s[62:63], s[0:1], 48")
    a("v_lshrrev_b32 v%d, 6, v0" % VTMP)
    a("v_readfirstlane_b32 s3, v%d" % VTMP)
    a("v_and_b32 v%d, 63, v0" % VTMP)
    a("s_and_b32 s4, s2, 7")
    a("s_lshl_b32 s4, s4, 2")
    a("s_lshr_b32 s5, s2, 3")
    a("s_and_b32 s5, s5, 3")
    a("s_add_u32 s4, s4, s5")
    a("s_lshr_b32 s5, s2, 5")
    L = VTMP; T1 = VTMP + 1; T2 = VTMP + 2; T3 = VTMP + 3
    a("v_lshrrev_b32 v%d, 3, v%d" % (T1, L))
    a("v_and_b32 v%d, 7, v%d" % (T2, L))
    a("v_bfe_u32 v%d, v%d, 4, 1" % (T3, L))
    a("v_lshlrev_b32 v%d, 2, v%d" % (T3, T3))
    a("v_xor_b32 v%d, v%d, v%d" % (T3, T2, T3))
    a("v_lshlrev_b32 v%d, 4, v%d" % (T3, T3))
    a("v_lshl_add_u32 v%d, v%d, 13, v%d" % (VW, T1, T3))
    a("v_lshrrev_b32 v%d, 1, v%d" % (T3, T1))
    a("v_xor_b32 v%d, v%d, v%d" % (T3, T2, T3))
    a("v_lshlrev_b32 v%d, 4, v%d" % (T3, T3))
    a("v_lshl_add_u32 v%d, v%d, 10, v%d" % (VXD, T1, T3))
    a("v_xor_b32 v%d, 64, v%d" % (VTMP + 4, VXD))
    VXD2 = VTMP + 4
    a("v_lshlrev_b32 v%d, 4, v%d" % (VL16, L))
    a("v_and_b32 v%d, 31, v%d" % (T1, L))
    a("v_bfe_u32 v%d, v%d, 1, 3" % (T2, L))
    a("v_lshrrev_b32 v%d, 5, v%d" % (T3, L))
    a("v_xor_b32 v%d, v%d, v%d" % (T2, T2, T3))
    a("v_lshlrev_b32 v%d, 4, v%d" % (T2, T2))
    a("v_lshl_add_u32 v%d, v%d, 7, v%d" % (T1, T1, T2))
    a("s_mul_i32 s50, s3, 12288")
    a("s_add_u32 s50, s50, %d" % XBASE)
    for k in range(4):
        a("v_xor_b32 v%d, %d, v%d" % (T2, 32 * k, T1))
        a("v_add_u32 v%d, s50, v%d" % (VXR + k, T2))
    a("v_lshrrev_b32 v%d, 5, v%d" % (T1, L))
    a("v_lshlrev_b32 v%d, 10, v%d" % (T1, T1))
    a("v_bfe_u32 v%d, v%d, 2, 2" % (T2, L))
    a("v_lshl_add_u32 v%d, v%d, 7, v%d" % (T1, T2, T1))
    a("v_bfe_u32 v%d, v%d, 4, 1" % (T3, L))
    a("v_lshl_add_u32 v%d, v%d, 5, v%d" % (T1, T3, T1))
    a("v_and_b32 v%d, 3, v%d" % (T3, L))
    a("v_lshl_add_u32 v%d, v%d, 3, v%d" % (T1, T3, T1))
    a("v_bfe_u32 v%d, v%d, 3, 1" % (T2, L))
    for nt in range(2):
        a("v_xor_b32 v%d, %d, v%d" % (T3, nt, T2))
        a("v_lshl_add_u32 v%d, v%d, 6, v%d" % (VT + nt, T3, T1))
    a("s_waitcnt lgkmcnt(0)")
    srd(a, 8, 32, 33, 2048 * 512 * 2)
    srd(a, 12, 34, 35, 2048 * 512 * 2)
    srd(a, 16, 36, 37, 512 * 4096 * 2)
    srd(a, 20, 38, 39, 512 * 4096 * 2)
    srd(a, 24, 40, 41, 512 * 4096 * 2)
    srd(a, 28, 42, 43, WS_END)
    srd(a, 56, 52, 53, 4096 * 512 * 2)
    srd(a, 60, 62, 63, 2048 * 512 * 2)
    a("s_lshl_b32 s6, s5, 3")
    a("s_add_u32 s6, s6, s3")
    a("s_mov_b32 s47, s6")
    a("s_lshl_b32 s6, s6, 15")
    a("s_lshl_b32 s7, s3, 17")
    a("s_lshl_b32 s46, s4, 8")
    a("s_add_u32 s7, s7, s46")
    a("s_lshl_b32 s44, s3, 11")
    a("s_lshl_b32 s45, s4, 6")
    a("s_add_u32 s45, s45, s47")
    a("s_lshl_b32 s45, s45, 13")
    a("s_lshr_b32 s48, s47, 1")
    a("s_lshl_b32 s46, s4, 5")
    a("s_add_u32 s48, s48, s46")
    a("s_lshl_b32 s48, s48, 14")
    a("s_and_b32 s46, s3, 1")
    a("s_lshl_b32 s46, s46, 11")
    a("s_add_u32 s48, s48, s46")
    a("s_add_u32 s48, s48, 0x%x" % WS_V)
    a("s_mov_b32 s49, 0x%08x" % f32bits((128 ** -0.5) * math.log2(math.e)))
    a("s_mov_b32 s54, 0x%08x" % f32bits(2.0 ** VSC))

    def dostamp(i):
        if not stamp: return
        a("s_memtime s[64:65]")
        a("s_waitcnt lgkmcnt(0)")
        a.lg = []
        a("v_writelane_b32 v235, s64, %d" % i)
    ORDER = [(0, 0), (1, 0), (0, 1), (1, 1), (0, 2), (1, 2), (0, 3), (1, 3)] + [(hp, c) for hp in range(2, 6) for c in range(4)]
    XS = {-1: [0, 1], 0: [2], 1: [3], 2: [4], 3: [5, 8], 4: [6, 9], 5: [7, 10], 6: [11], 7: [12, 13], 8: [14], 9: [15]}
    XORD = [n for k in sorted(XS) for n in XS[k]]
    XPOS = {n: i for i, n in enumerate(XORD)}

    def dma(gc):
        if nodma: return
        hp, c = ORDER[gc]
        mat, nh = hp // 2, hp % 2
        slot = gc % NS
        for i in range(2):
            a("s_add_u32 s46, s7, 0x%x" % ((128 * c + 8 * i) * 8192 + nh * 128))
            a("s_add_u32 m0, s44, 0x%x" % (slot * 16384 + i * 1024))
            a.vmem("buffer_load_dwordx4 v%d, s[%d:%d], s46 offen lds" % (VW, 16 + 4 * mat, 19 + 4 * mat), ("w", gc))

    def xdma(n):
        if nox: return
        which, i = n // 8, n % 8
        slot = XPOS[n] % 3
        for ip in range(4):
            a("s_add_u32 s46, s6, 0x%x" % (ip * 8192 + i * 128))
            a("s_add_u32 m0, s50, 0x%x" % (slot * 4096 + ip * 1024))
            a.vmem("buffer_load_dwordx4 v%d, s[%d:%d], s46 offen lds" % (VXD2 if ip & 1 else VXD, 8 + 4 * which, 11 + 4 * which), ("x", n))

    def xread(n):
        if nox: return
        i = n % 8
        slot = XPOS[n] % 3
        a.wait_vm(("x", n))
        for k in range(4):
            a.lds("ds_read_b128 %s, v%d offset:%d" % (v(XF + 4 * (4 * i + k), 4), VXR + k, slot * 4096), ("xr", n))
        if XPOS[n] + 3 < 16:
            a.wait_lg(("xr", n))
            xdma(XORD[XPOS[n] + 3])

    NF = 24 * 16

    def fread(f):
        if notr: return
        gc, r = f // 16, f % 16
        nt, ks = r // 8, r % 8
        slot = gc % NS
        reg = WF + 4 * (f % NR)
        for e in range(2):
            a.lds("ds_read_b64_tr_b16 %s, v%d offset:%d" % (v(reg + 2 * e, 2), VT + nt, slot * 16384 + (16 * ks + 4 * e) * 128), ("f", f))

    def pack(hp, nt2):
        mat = hp // 2
        acc = ACC + 32 * (hp % 2) + 16 * nt2
        if mat == 0:
            for i in range(16):
                a("v_mul_f32 v%d, s49, v%d" % (acc + i, acc + i))
        if mat == 2 and VSC:
            for i in range(16):
                a("v_mul_f32 v%d, s54, v%d" % (acc + i, acc + i))
        for g in range(2):
            for i in range(4):
                a("v_cvt_pk_bf16_f32 v%d, v%d, v%d" % (acc + 8 * g + i, acc + 8 * g + 2 * i, acc + 8 * g + 2 * i + 1))

    def store(hp, nt2, g):
        if nost: return
        mat, nh = hp // 2, hp % 2
        nt = 2 * nh + nt2
        pk = ACC + 32 * (hp % 2) + 16 * nt2 + 8 * g
        if mat < 2:
            ks = 2 * nt + g
            base = (WS_Q if mat == 0 else WS_K) + (ks // 4) * 4096
            a("s_add_u32 s46, s45, 0x%x" % base)
            a.vmem("buffer_store_dwordx4 %s, v%d, s[28:31], s46 offen offset:%d %s" % (v(pk, 4), VL16, (ks % 4) * 1024, stf), "st")
        else:
            a("s_add_u32 s46, s48, 0x%x" % (nt * 4096))
            a.vmem("buffer_store_dwordx4 %s, v%d, s[28:31], s46 offen offset:%d %s" % (v(pk, 4), VL16, g * 1024, stf), "st")

    dostamp(0)
    dma(0)
    xdma(0); xdma(1)
    dma(1)
    xdma(2)
    dma(2)
    pfq = []
    if pref:
        a("s_lshl_b32 s55, s2, 3")
        a("s_add_u32 s55, s55, s3")
        a("s_lshl_b32 s66, s55, 10")
        a("s_lshl_b32 s55, s55, 11")
        pfq.append("buffer_load_dwordx4 v[252:255], v%d, s[12:15], s66 offen" % VL16)
        for sr in (16, 20, 24, 56):
            for i in range(2):
                pfq.append("buffer_load_dwordx4 v[252:255], v%d, s[%d:%d], s55 offen offset:%d" % (VL16, sr, sr + 3, 1024 * i))
        pfq.append("buffer_load_dwordx4 v[252:255], v%d, s[60:63], s66 offen" % VL16)
        pfq = pfq[PFSKIP:]
    xsched = XS
    for n in xsched[-1]: xread(n)
    pend_pack = []
    pend_store = []
    for gc in range(24):
        hp, c = ORDER[gc]
        mat = hp // 2
        if gc == 0:
            a.wait_vm(("w", 0))
        if gc + 1 < 24:
            a.wait_vm(("w", gc + 1))
        a("s_barrier")
        dostamp(gc + 1)
        if gc + 3 < 24:
            dma(gc + 3)
        for _ in range(PFN if gc >= PFS else 0):
            if pfq: a.vmem(pfq.pop(0), "pf")
        if c == 0 and hp >= 2:
            for p in [p for p in pend_pack if p[0] % 2 == hp % 2]:
                pend_pack.remove(p); pack(*p); pend_store += [(p[0], p[1], 0), (p[0], p[1], 1)]
            for p in [p for p in pend_store if p[0] % 2 == hp % 2]:
                pend_store.remove(p); store(*p)
        elif pend_store:
            for _ in range(2 if (c == 3 or gc == 7) else 1):
                if pend_store: store(*pend_store.pop(0))
        if gc == 0:
            for f in range(D): fread(f)
        for nt in range(2):
            for ks in range(8):
                f = gc * 16 + nt * 8 + ks
                if f + D < NF: fread(f + D)
                a.wait_lg(("f", f))
                if nt == 0 and ks % 4 == 0:
                    a.wait_lg(("xr", (8 if mat > 0 else 0) + 2 * c + ks // 4))
                acc = v(ACC + 32 * (hp % 2) + 16 * nt, 16)
                wf = v(WF + 4 * (f % NR), 4)
                xf = v(XF + 4 * (8 * c + ks), 4)
                cc = "0" if (c == 0 and ks == 0) else acc
                if mat < 2:
                    a("v_mfma_f32_32x32x16_bf16 %s, %s, %s, %s" % (acc, wf, xf, cc))
                else:
                    a("v_mfma_f32_32x32x16_bf16 %s, %s, %s, %s" % (acc, xf, wf, cc))
                if ks == 3 and pend_pack:
                    p = pend_pack.pop(0)
                    pack(*p)
                    pend_store += [(p[0], p[1], 0), (p[0], p[1], 1)]
            if c == 3:
                pend_pack.append((hp, nt))
        for n in xsched.get(gc, []): xread(n)
        if gc == 11:
            WO = VTMP + 6
            a("v_lshrrev_b32 v%d, 13, v%d" % (WO, VW))
            a("v_and_b32 v%d, 0x7f, v%d" % (WO + 1, VW))
            a("v_lshl_add_u32 v%d, v%d, 10, v%d" % (WO, WO, WO + 1))
            a("s_lshl_b32 s51, s2, 14")
            a("s_lshl_b32 s46, s3, 7")
            a("s_add_u32 s51, s51, s46")
            for i in range(2):
                a("s_add_u32 s46, s51, %d" % (i * 8192))
                a("s_add_u32 m0, s50, %d" % (i * 1024))
                a.vmem("buffer_load_dwordx4 v%d, s[56:59], s46 offen lds" % WO, "wo")
        if gc == 12:
            UO = VTMP + 5
            a("v_lshrrev_b32 v%d, 7, v%d" % (UO, VL16))
            a("v_and_b32 v%d, 0x70, v%d" % (VTMP + 7, VL16))
            a("v_lshl_add_u32 v%d, v%d, 10, v%d" % (UO, UO, VTMP + 7))
            a("s_lshr_b32 s51, s2, 3")
            a("s_lshl_b32 s51, s51, 16")
            a("s_lshl_b32 s46, s3, 13")
            a("s_add_u32 s51, s51, s46")
            a("s_and_b32 s46, s2, 7")
            a("s_lshl_b32 s46, s46, 7")
            a("s_add_u32 s51, s51, s46")
            a("s_add_u32 m0, s50, 4096")
            a.vmem("buffer_load_dwordx4 v%d, s[60:63], s51 offen lds" % UO, "ut")
        if gc == 14:
            a.wait_vm("ut")
        if gc == 17:
            UO = VTMP + 5
            a("v_bfe_u32 v%d, v%d, 5, 3" % (UO, VL16))
            a("v_mul_u32_u24 v%d, 12288, v%d" % (UO, UO))
            a("v_bfe_u32 v%d, v%d, 4, 1" % (VTMP + 7, VL16))
            a("v_lshl_add_u32 v%d, v%d, 9, v%d" % (UO, VTMP + 7, UO))
            a("v_lshrrev_b32 v%d, 8, v%d" % (VTMP + 7, VL16))
            a("v_lshl_add_u32 v%d, v%d, 2, v%d" % (UO, VTMP + 7, UO))
            a("s_lshl_b32 s46, s3, 4")
            a("s_add_u32 s46, s46, %d" % (XBASE + 4096))
            a("v_add_u32 v%d, s46, v%d" % (UO, UO))
            for i in range(4):
                a.lds("ds_read_b32 v%d, v%d offset:%d" % (VTMP + 8 + i, UO, 128 * i), "utr")
            a("v_lshlrev_b32 v%d, 13, v%d" % (VTMP + 7, VTMP + 7))
            a("v_and_b32 v%d, 0xf0, v%d" % (UO, VL16))
            a("v_add_u32 v%d, v%d, v%d" % (UO, UO, VTMP + 7))
            a("s_and_b32 s51, s2, 7")
            a("s_lshl_b32 s51, s51, 18")
            a("s_lshl_b32 s46, s3, 15")
            a("s_add_u32 s51, s51, s46")
            a("s_lshr_b32 s46, s2, 3")
            a("s_lshl_b32 s46, s46, 8")
            a("s_add_u32 s51, s51, s46")
            a("s_add_u32 s51, s51, 0x%x" % WS_UT)
            a.wait_lg("utr")
            a.vmem("buffer_store_dwordx4 %s, v%d, s[28:31], s51 offen %s" % (v(VTMP + 8, 4), UO, stf), "st")
        if gc == 15:
            WO = VTMP + 6
            a("v_lshrrev_b32 v%d, 9, v%d" % (WO, VL16))
            a("v_lshlrev_b32 v%d, 9, v%d" % (WO, WO))
            a("v_subrev_u32 v%d, s50, v%d" % (WO, WO))
            a("v_sub_u32 v%d, v%d, v%d" % (WO + 1, VT + 1, WO))
            a("v_sub_u32 v%d, v%d, v%d" % (WO, VT, WO))
            a.wait_vm("wo")
            for mt2 in range(2):
                for e in range(2):
                    a.lds("ds_read_b64_tr_b16 %s, v%d offset:%d" % (v(VTMP + 8 + 4 * mt2 + 2 * e, 2), WO + mt2, 8 * e * 128), "wor")
            a.wait_lg("wor")
            a("s_lshl_b32 s51, s3, 19")
            a("s_lshl_b32 s46, s2, 10")
            a("s_add_u32 s51, s51, s46")
            a("s_add_u32 s51, s51, 0x%x" % WS_WO)
            for mt2 in range(2):
                a("s_add_u32 s46, s51, 0x%x" % (mt2 << 18))
                a.vmem("buffer_store_dwordx4 %s, v%d, s[28:31], s46 offen %s" % (v(VTMP + 8 + 4 * mt2, 4), VL16, stf), "st")
    while pend_pack:
        p = pend_pack.pop(0)
        pack(*p)
        pend_store += [(p[0], p[1], 0), (p[0], p[1], 1)]
    while pend_store:
        store(*pend_store.pop(0))
    if stamp:
        dostamp(25)
        a("s_waitcnt vmcnt(0)")
        dostamp(26)
        a("s_lshl_b32 s46, s2, 3")
        a("s_add_u32 s46, s46, s3")
        a("s_lshl_b32 s46, s46, 8")
        a("s_add_u32 s46, s46, 0x%x" % (60 << 20))
        a("v_lshrrev_b32 v251, 2, v%d" % VL16)
        a("buffer_store_dword v235, v251, s[28:31], s46 offen")
    a.label("L_k1_end")
    a("s_endpgm")
    return a.lines
```

```python
from asmlib import *
from k1 import srd, f32bits, WS_UT, WS_END
import math

CSTR = 4160
UCH = 8 * CSTR
L_KB = 0
L_R = 12288
L_PAR = L_R
L_TAB = L_R + 4096
YSTR = 144
YW = 64 * YSTR
L_Y = 0
K4_LDS = max(L_R + 2 * UCH + 64, 8 * YW)


def gen_ssm_body(a, wgreg="s2"):
    L, T1, T2, T3, T4 = 1, 2, 3, 4, 5
    UR = 8
    a("s_load_dwordx4 s[32:35], s[0:1], 48")
    a("s_load_dwordx4 s[36:39], s[0:1], 64")
    a("s_load_dwordx4 s[40:43], s[0:1], 80")
    a("s_load_dwordx4 s[44:47], s[0:1], 96")
    a("s_load_dwordx4 s[48:51], s[0:1], 112")
    a("s_load_dwordx2 s[52:53], s[0:1], 136")
    a("v_lshrrev_b32 v%d, 6, v0" % T1)
    a("v_readfirstlane_b32 s3, v%d" % T1)
    a("v_and_b32 v%d, 63, v0" % L)
    a("s_and_b32 s59, %s, 7" % wgreg)
    a("s_lshl_b32 s59, s59, 5")
    a("s_lshr_b32 s4, %s, 3" % wgreg)
    a("s_add_u32 s59, s59, s4")
    wgreg = "s59"
    a("s_lshl_b32 s4, %s, 2" % wgreg)
    a("s_waitcnt lgkmcnt(0)")
    a("s_load_dword s5, s[46:47], s4")
    a("s_load_dword s6, s[48:49], s4")
    srd(a, 8, 52, 53, WS_END)
    srd(a, 12, 50, 51, 2048 * 1024 * 2)
    a("v_mov_b32 v16, 0"); a("v_mov_b32 v17, 0"); a("v_mov_b32 v18, 0"); a("v_mov_b32 v19, 0")
    a("s_cmp_ge_u32 s3, 4")
    a("s_cbranch_scc1 L_ssm_nopar0")
    a("v_lshlrev_b32 v%d, 1, v0" % T2)
    a("s_lshl_b32 s7, %s, 9" % wgreg)
    srcs = [(34, 35), (36, 37), (38, 39), (40, 41), (42, 43), (44, 45)]
    for i, (lo, hi) in enumerate(srcs):
        srd(a, 16, lo, hi, 512 * 128 * 2)
        a("buffer_load_ushort v%d, v%d, s[16:19], s7 offen" % (20 + i, T2))
    a.label("L_ssm_nopar0")
    a("v_lshlrev_b32 v%d, 2, v0" % T1)
    a("s_lshl_b32 s7, %s, 13" % wgreg)
    a("s_add_u32 s7, s7, 0x%x" % WS_UT)
    for r in range(4):
        if r == 2: a("s_add_u32 s7, s7, 4096")
        a("buffer_load_dword v%d, v%d, s[8:11], s7 offen offset:%d" % (UR + r, T1, (r % 2) * 2048))
    a("s_cmp_ge_u32 s3, 4")
    a("s_cbranch_scc0 L_ssm_par")
    a("v_subrev_u32 v%d, 256, v0" % T2)
    a("v_lshrrev_b32 v%d, 5, v%d" % (T1, T2))
    a("v_mul_u32_u24 v%d, 1536, v%d" % (T1, T1))
    a("v_and_b32 v%d, 31, v%d" % (T2, T2))
    a("v_lshl_add_u32 v%d, v%d, 4, v%d" % (T1, T2, T1))
    a("ds_write_b128 v%d, v[16:19] offset:%d" % (T1, L_KB))
    a("s_branch L_ssm_nopar")
    a.label("L_ssm_par")
    a("s_waitcnt lgkmcnt(0)")
    a("s_lshl_b32 s16, s5, 16")
    a("s_and_b32 s17, s5, 0xffff0000")
    a("s_cmp_lt_u32 s3, 2")
    a("s_cselect_b32 s16, s16, s17")
    a("v_mov_b32 v%d, 0x%08x" % (T3, f32bits(math.log2(math.e))))
    a("v_mul_f32 v%d, s16, v%d" % (T3, T3))
    a("v_exp_f32 v%d, v%d" % (T3, T3))
    a("v_cvt_pk_bf16_f32 v%d, v%d, v%d" % (T3, T3, T3))
    a("v_lshlrev_b32 v%d, 16, v%d" % (T3, T3))
    a("s_waitcnt vmcnt(4)")
    for i in range(6): a("v_lshlrev_b32 v%d, 16, v%d" % (20 + i, 20 + i))
    a("v_mul_f32 v28, v%d, v20" % T3)
    a("v_mul_f32 v28, 0x%08x, v28" % f32bits(math.log2(math.e)))
    a("v_mul_f32 v29, v%d, v21" % T3)
    a("v_mul_f32 v29, 0x%08x, v29" % f32bits(1.0 / (2 * math.pi)))
    a("v_mul_f32 v22, v%d, v22" % T3)
    a("v_mul_f32 v23, v%d, v23" % T3)
    a("v_mul_f32 v30, v24, v22")
    a("v_fma_f32 v30, -v25, v23, v30")
    a("v_mul_f32 v31, v24, v23")
    a("v_fmac_f32 v31, v25, v22")
    a("v_lshlrev_b32 v%d, 4, v0" % T1)
    a("ds_write_b128 v%d, v[28:31] offset:%d" % (T1, L_PAR))
    a.label("L_ssm_nopar")
    ACC = 64
    FB, FH, PA = 12, 13, 20
    a("v_and_b32 v%d, 15, v%d" % (T1, L))
    a("v_lshlrev_b32 v%d, 3, v%d" % (T2, T1))
    a("v_cvt_f32_u32 v%d, v%d" % (FB, T2))
    a("v_lshrrev_b32 v%d, 3, v%d" % (T2, T1))
    a("v_and_b32 v%d, 7, v%d" % (T3, T1))
    a("v_lshl_add_u32 v%d, v%d, 7, v%d" % (T2, T2, T3))
    a("v_cvt_f32_u32 v%d, v%d" % (FH, T2))
    a("v_lshl_add_u32 v%d, v%d, 1, 16" % (T2, T1))
    a("v_lshlrev_b32 v%d, 2, v%d" % (T3, T1))
    a("v_cmp_gt_u32 vcc, 8, v%d" % T1)
    a("v_cndmask_b32 v%d, v%d, v%d, vcc" % (T2, T3, T2))
    a("v_lshrrev_b32 v%d, 3, v%d" % (T3, T2))
    a("v_and_b32 v%d, 7, v%d" % (T2, T2))
    a("v_lshl_add_u32 v%d, v%d, 7, v%d" % (T2, T3, T2))
    a("v_cvt_f32_u32 v%d, v%d" % (FH + 1, T2))
    a("v_min_u32 v%d, 8, v%d" % (T2, T1))
    a("v_add_u32 v%d, 8, v%d" % (T2, T2))
    a("v_lshlrev_b32 v%d, 7, v%d" % (T2, T2))
    a("v_cvt_f32_u32 v%d, v%d" % (FH + 2, T2))
    a("v_lshrrev_b32 v%d, 4, v%d" % (T1, L))
    a("s_lshl_b32 s7, s3, 9")
    a("v_lshlrev_b32 v%d, 4, v%d" % (T1, T1))
    a("v_add_u32 v%d, s7, v%d" % (PA, T1))
    for i in range(12): a("v_mov_b32 v%d, 0" % (ACC + i))
    a("s_waitcnt lgkmcnt(0)")
    a("s_barrier")
    for t in range(8):
        a("ds_read_b128 v[%d:%d], v%d offset:%d" % (96 + 4 * t, 99 + 4 * t, PA, L_PAR + 64 * t))
    a("s_waitcnt lgkmcnt(0)")
    for t in range(8):
        pa, pb, wr, wi = 96 + 4 * t, 97 + 4 * t, 98 + 4 * t, 99 + 4 * t
        o = 32 + 8 * (t % 2)
        for q in range(4):
            f = FB if q == 0 else FH + q - 1
            x = 48 + 4 * q
            a("v_mul_f32 v%d, v%d, v%d" % (x, pa, f))
            a("v_mul_f32 v%d, v%d, v%d" % (x + 1, pb, f))
            a("v_exp_f32 v%d, v%d" % (x, x))
            a("v_fract_f32 v%d, v%d" % (x + 1, x + 1))
            a("v_cos_f32 v%d, v%d" % (x + 2, x + 1))
            a("v_sin_f32 v%d, v%d" % (x + 3, x + 1))
        a("v_mul_f32 v%d, v48, v50" % o)
        a("v_mul_f32 v%d, v48, v51" % (o + 1))
        for q in range(1, 4):
            x = 48 + 4 * q
            ar, ai = o + 2 * q, o + 2 * q + 1
            a("v_mul_f32 v%d, v%d, v%d" % (ar, wr, x + 2))
            a("v_mul_f32 v%d, v%d, v%d" % (ai, wr, x + 3))
            a("v_fma_f32 v%d, -v%d, v%d, v%d" % (ar, wi, x + 3, ar))
            a("v_fmac_f32 v%d, v%d, v%d" % (ai, wi, x + 2))
            a("v_mul_f32 v%d, v%d, v%d" % (ar, x, ar))
            a("v_mul_f32_e64 v%d, -v%d, v%d" % (ai, x, ai))
        for part in range(2):
            for q in range(1, 4):
                acc = v(ACC + 4 * (q - 1), 4)
                a("v_mfma_f32_16x16x4_f32 %s, v%d, v%d, %s" % (acc, o + 2 * q + part, o + part, acc))
    a("v_and_b32 v%d, 15, v%d" % (T1, L))
    a("v_lshrrev_b32 v%d, 4, v%d" % (T2, L))
    a("v_lshl_add_u32 v%d, v%d, 6, v%d" % (T1, T2, T1))
    a("v_lshlrev_b32 v%d, 2, v%d" % (T1, T1))
    a("s_mul_i32 s7, s3, 3072")
    a("v_add_u32 v%d, s7, v%d" % (T1, T1))
    for r in range(3):
        for i in range(4):
            a("ds_write_b32 v%d, v%d offset:%d" % (T1, ACC + 4 * r + i, L_TAB + r * 1024 + i * 64))
    a("v_and_b32 v%d, 255, v0" % T2)
    a("v_lshrrev_b32 v%d, 8, v0" % T1)
    a("v_mul_u32_u24 v%d, 12288, v%d" % (T3, T1))
    for e in range(8):
        x = 32 + e; y = 40 + e; z = 48 + e
        a("v_lshl_add_u32 v%d, v%d, 3, %d" % (x, T2, e))
        a("v_cvt_f32_u32 v%d, v%d" % (x, x))
        a("v_cvt_pk_bf16_f32 v%d, v%d, v%d" % (x, x, x))
        a("v_lshlrev_b32 v%d, 16, v%d" % (x, x))
        a("v_cvt_u32_f32 v%d, v%d" % (y, x))
        a("v_lshrrev_b32 v%d, 23, v%d" % (x, x))
        a("v_subrev_u32 v%d, 134, v%d" % (x, x))
        a("v_med3_i32 v%d, v%d, 0, 3" % (x, x))
        a("v_lshrrev_b32 v%d, 7, v%d" % (z, y))
        a("v_lshlrev_b32 v%d, 3, v%d" % (z, z))
        a("v_and_or_b32 v%d, v%d, 7, v%d" % (z, y, z))
        a("v_lshrrev_b32 v%d, v%d, v%d" % (z, x, z))
        a("v_lshl_add_u32 v%d, v%d, 3, v%d" % (z, x, z))
        a("v_bfe_u32 v%d, v%d, 3, 4" % (y, y))
        a("v_lshl_add_u32 v%d, v%d, 4, v%d" % (z, z, y))
        a("v_lshl_add_u32 v%d, v%d, 2, v%d" % (x, z, T3))
    a("s_waitcnt lgkmcnt(0)")
    a("s_barrier")
    for e in range(8):
        for w in range(4):
            a("ds_read_b32 v%d, v%d offset:%d" % (64 + 4 * e + w, 32 + e, L_TAB + w * 3072))
        if e in (2, 5): a("s_waitcnt lgkmcnt(4)")
    a("s_waitcnt lgkmcnt(0)")
    for e in range(8):
        b = 64 + 4 * e
        a("v_add_f32 v%d, v%d, v%d" % (b, b, b + 1))
        a("v_add_f32 v%d, v%d, v%d" % (b + 2, b + 2, b + 3))
        a("v_add_f32 v%d, v%d, v%d" % (b, b, b + 2))
    for i in range(4):
        a("v_cvt_pk_bf16_f32 v%d, v%d, v%d" % (32 + i, 64 + 8 * i, 68 + 8 * i))
    a("v_and_b32 v%d, 3, v%d" % (T3, T2))
    a("v_mul_u32_u24 v%d, 1536, v%d" % (T3, T3))
    a("v_mul_u32_u24 v%d, 6144, v%d" % (T4, T1))
    a("v_add_u32 v%d, v%d, v%d" % (T3, T3, T4))
    a("v_lshrrev_b32 v%d, 2, v%d" % (T4, T2))
    a("v_lshl_add_u32 v%d, v%d, 4, v%d" % (T3, T4, T3))
    a("ds_write_b128 v%d, v[32:35] offset:%d" % (T3, L_KB + 512))
    a("s_waitcnt lgkmcnt(0)")
    a("s_barrier")
    a("s_waitcnt vmcnt(0)")
    a("v_sub_u32 v%d, 2047, v0" % T3)
    a("v_lshlrev_b32 v%d, 1, v%d" % (T3, T3))
    a("v_add_u32 v%d, %d, v%d" % (T3, L_R - 3072, T3))
    for r in range(4):
        a("ds_write_b16 v%d, v%d offset:%d" % (T3, UR + r, (3 - r) * 1024))
        a("ds_write_b16_d16_hi v%d, v%d offset:%d" % (T3, UR + r, UCH + (3 - r) * 1024))
    a("v_mul_u32_u24 v%d, %d, v%d" % (T4, UCH, T1))
    a("v_lshl_add_u32 v%d, v%d, 4, v%d" % (T4, T2, T4))
    a("v_add_u32 v%d, %d, v%d" % (T4, L_R, T4))
    a("v_cmp_gt_u32 vcc, 4, v%d" % T2)
    a("s_and_saveexec_b64 s[16:17], vcc")
    a("s_cbranch_execz L_ssm_noext")
    for sft in range(0, 8):
        a("ds_write_b128 v%d, v[16:19] offset:%d" % (T4, 4096 + sft * CSTR))
    a.label("L_ssm_noext")
    a("s_mov_b64 exec, s[16:17]")
    a("s_waitcnt lgkmcnt(0)")
    a("s_barrier")
    a("ds_read_b128 v[32:35], v%d" % T4)
    a("ds_read_b128 v[36:39], v%d offset:16" % T4)
    a("s_waitcnt lgkmcnt(0)")
    for sft in range(1, 8):
        d = 40 + 4 * (sft % 4)
        for k in range(4):
            w = 32 + sft // 2 + k
            if sft % 2 == 0:
                a("v_mov_b32 v%d, v%d" % (d + k, w))
            else:
                a("v_alignbyte_b32 v%d, v%d, v%d, 2" % (d + k, w + 1, w))
        a("ds_write_b128 v%d, %s offset:%d" % (T4, v(d, 4), sft * CSTR))
    AA, BA = 12, 13
    a("v_and_b32 v%d, 31, v%d" % (T1, L))
    a("v_lshrrev_b32 v%d, 5, v%d" % (T2, L))
    a("v_sub_u32 v%d, 7, v%d" % (T3, T1))
    a("v_and_b32 v%d, 7, v%d" % (T3, T3))
    a("v_mul_u32_u24 v%d, %d, v%d" % (AA, CSTR, T3))
    a("v_lshrrev_b32 v%d, 3, v%d" % (T3, T1))
    a("v_sub_u32 v%d, v%d, v%d" % (T3, T2, T3))
    a("v_lshl_add_u32 v%d, v%d, 4, v%d" % (AA, T3, AA))
    a("s_lshr_b32 s7, s3, 2")
    a("s_and_b32 s17, s3, 3")
    a("s_mul_i32 s16, s7, %d" % UCH)
    a("s_lshl_b32 s18, s17, 6")
    a("s_sub_u32 s16, s16, s18")
    a("s_add_u32 s16, s16, %d" % (L_R + 4080 - 256 * 15))
    a("v_add_u32 v%d, s16, v%d" % (AA, AA))
    a("v_mul_u32_u24 v%d, 1536, v%d" % (BA, T2))
    a("v_lshl_add_u32 v%d, v%d, 4, v%d" % (BA, T1, BA))
    a("s_mul_i32 s16, s7, 6144")
    a("s_lshl_b32 s18, s17, 4")
    a("s_sub_u32 s16, s16, s18")
    a("s_add_u32 s16, s16, %d" % (L_KB + 1024 - 64 * 15))
    a("v_add_u32 v%d, s16, v%d" % (BA, BA))
    a("v_subrev_u32 v%d, 512, v%d" % (BA + 1, BA))
    a("s_waitcnt lgkmcnt(0)")
    a("s_barrier")
    a.lg = []
    seq = []
    for mm in range(16):
        for ks in range(2):
            seq.append(("a", mm, ks))
            seq.append(("b", mm, ks, 1))
            if mm < 8: seq.append(("b", mm, ks, 0))
    NRG = 10; DD = 6; RB = 72
    issued = [0]

    def issue():
        if issued[0] >= len(seq): return
        it = seq[issued[0]]
        reg = RB + 4 * (issued[0] % NRG)
        mm, ks = it[1], it[2]
        if it[0] == "a":
            a.lds("ds_read_b128 %s, v%d offset:%d" % (v(reg, 4), AA, 256 * (15 - mm) + 32 * ks), ("c", issued[0]))
        else:
            a.lds("ds_read_b128 %s, v%d offset:%d" % (v(reg, 4), BA + (1 - it[3]), 64 * (15 - mm) + 3072 * ks), ("c", issued[0]))
        issued[0] += 1
    for _ in range(DD): issue()
    areg = None
    first = {0: True, 1: True}
    for n, it in enumerate(seq):
        issue()
        reg = RB + 4 * (n % NRG)
        if it[0] == "a":
            areg = reg
        else:
            a.wait_lg(("c", n))
            acc = v(32 + 16 * it[3], 16)
            a("v_mfma_f32_32x32x16_bf16 %s, %s, %s, %s" % (acc, v(areg, 4), v(reg, 4), "0" if first[it[3]] else acc))
            first[it[3]] = False
    a("s_barrier")
    a("v_mul_u32_u24 v%d, %d, v%d" % (T3, YSTR, T1))
    a("v_lshl_add_u32 v%d, v%d, 4, v%d" % (T3, T2, T3))
    a("s_mul_i32 s16, s3, %d" % YW)
    a("v_add_u32 v%d, s16, v%d" % (T3, T3))
    for nt in range(2):
        for j in range(4):
            a("ds_write_b128 v%d, %s offset:%d" % (T3, v(32 + 16 * nt + 4 * j, 4), nt * 32 * YSTR + j * 32))
    a("s_waitcnt lgkmcnt(0)")
    a("s_barrier")
    a("v_lshrrev_b32 v%d, 5, v0" % T1)
    a("v_mul_u32_u24 v%d, %d, v%d" % (T1, YSTR, T1))
    a("v_and_b32 v%d, 31, v0" % T2)
    a("v_lshl_add_u32 v%d, v%d, 2, v%d" % (T1, T2, T1))
    a("v_add_u32 v%d, %d, v%d" % (T2, 4 * YW, T1))
    for r in range(4):
        for ch in range(2):
            for w in range(4):
                a("ds_read_b32 v%d, v%d offset:%d" % (32 + 8 * r + 4 * ch + w, T1 if ch == 0 else T2, w * YW + r * 16 * YSTR))
        a("s_waitcnt lgkmcnt(4)")
    a("s_lshl_b32 s16, s6, 16")
    a("s_and_b32 s17, s6, 0xffff0000")
    a("v_lshlrev_b32 v%d, 11, v0" % T1)
    a("s_waitcnt lgkmcnt(0)")
    for r in range(4):
        y = 32 + 8 * r
        for ch in range(2):
            b = y + 4 * ch
            a("v_add_f32 v%d, v%d, v%d" % (b, b, b + 1))
            a("v_add_f32 v%d, v%d, v%d" % (b + 2, b + 2, b + 3))
            a("v_add_f32 v%d, v%d, v%d" % (b, b, b + 2))
        a("v_cvt_pk_bf16_f32 v%d, v%d, v%d" % (y, y, y + 4))
        a("v_lshlrev_b32 v64, 16, v%d" % (UR + r))
        a("v_and_b32 v65, 0xffff0000, v%d" % (UR + r))
        a("v_mul_f32 v64, s16, v64")
        a("v_mul_f32 v65, s17, v65")
        a("v_cvt_pk_bf16_f32 v64, v64, v65")
        a("v_lshlrev_b32 v66, 16, v%d" % y)
        a("v_and_b32 v67, 0xffff0000, v%d" % y)
        a("v_lshlrev_b32 v65, 16, v64")
        a("v_and_b32 v64, 0xffff0000, v64")
        a("v_add_f32 v66, v66, v65")
        a("v_add_f32 v67, v67, v64")
        a("v_cvt_pk_bf16_f32 v%d, v66, v67" % (68 + r))
        a("s_add_u32 s18, s4, 0x%x" % (r * 512 * 2048 + 1024))
        a("buffer_store_dword v%d, v%d, s[12:15], s18 offen" % (68 + r, T1))


def gen_k4(name):
    a = Asm()
    a.label(name)
    a("s_cmp_ge_u32 s2, 256")
    a("s_cbranch_scc1 L_k4_end")
    gen_ssm_body(a)
    a.label("L_k4_end")
    a("s_endpgm")
    return a.lines
```

```python
from asmlib import *
import math, struct

WS_Q = 0
WS_K = 16 << 20
WS_V = 32 << 20
WS_C = 48 << 20
WS_WO = 64 << 20
WS_UT = 68 << 20
WS_END = 72 << 20
VSC = 0
PFN = 1
PFS = 2
PFSKIP = 0


def srd(a, d, lo, hi, nbytes):
    a("s_mov_b32 s%d, s%d" % (d, lo))
    a("s_and_b32 s%d, s%d, 0xffff" % (d + 1, hi))
    a("s_mov_b32 s%d, 0x%x" % (d + 2, nbytes))
    a("s_mov_b32 s%d, 0x20000" % (d + 3))


def f32bits(x):
    return struct.unpack("<I", struct.pack("<f", x))[0]


K1_LDS = 65536 + 8 * 12288
XSCHED = {-1: [0, 1], 0: [2, 3], 1: [4, 5], 2: [6, 7], 4: [8], 5: [9], 6: [10], 7: [11], 8: [12], 9: [13, 14], 10: [15]}


def gen_k1(name, nox=False, notr=False, nodma=False, nost=False, stf="sc1", stamp=False, pref=True):
    a = Asm()
    XF, ACC, WF = 0, 128, 192
    VXD, VW, VT, VL16, VXR, VTMP = 224, 225, 226, 228, 229, 236
    NS = 4; D = 6; NR = 8
    XBASE = 65536
    a.label(name)
    a("s_cmp_ge_u32 s2, 256")
    a("s_cbranch_scc1 L_k1_end")
    a("s_load_dwordx4 s[32:35], s[0:1], 0")
    a("s_load_dwordx4 s[36:39], s[0:1], 16")
    a("s_load_dwordx2 s[40:41], s[0:1], 32")
    a("s_load_dwordx2 s[42:43], s[0:1], 136")
    a("s_load_dwordx2 s[52:53], s[0:1], 40")
    a("s_load_dwordx2 s[62:63], s[0:1], 48")
    a("v_lshrrev_b32 v%d, 6, v0" % VTMP)
    a("v_readfirstlane_b32 s3, v%d" % VTMP)
    a("v_and_b32 v%d, 63, v0" % VTMP)
    a("s_and_b32 s4, s2, 7")
    a("s_lshl_b32 s4, s4, 2")
    a("s_lshr_b32 s5, s2, 3")
    a("s_and_b32 s5, s5, 3")
    a("s_add_u32 s4, s4, s5")
    a("s_lshr_b32 s5, s2, 5")
    L = VTMP; T1 = VTMP + 1; T2 = VTMP + 2; T3 = VTMP + 3
    a("v_lshrrev_b32 v%d, 3, v%d" % (T1, L))
    a("v_and_b32 v%d, 7, v%d" % (T2, L))
    a("v_bfe_u32 v%d, v%d, 4, 1" % (T3, L))
    a("v_lshlrev_b32 v%d, 2, v%d" % (T3, T3))
    a("v_xor_b32 v%d, v%d, v%d" % (T3, T2, T3))
    a("v_lshlrev_b32 v%d, 4, v%d" % (T3, T3))
    a("v_lshl_add_u32 v%d, v%d, 13, v%d" % (VW, T1, T3))
    a("v_lshrrev_b32 v%d, 1, v%d" % (T3, T1))
    a("v_xor_b32 v%d, v%d, v%d" % (T3, T2, T3))
    a("v_lshlrev_b32 v%d, 4, v%d" % (T3, T3))
    a("v_lshl_add_u32 v%d, v%d, 10, v%d" % (VXD, T1, T3))
    a("v_xor_b32 v%d, 64, v%d" % (VTMP + 4, VXD))
    VXD2 = VTMP + 4
    a("v_lshlrev_b32 v%d, 4, v%d" % (VL16, L))
    a("v_and_b32 v%d, 31, v%d" % (T1, L))
    a("v_bfe_u32 v%d, v%d, 1, 3" % (T2, L))
    a("v_lshrrev_b32 v%d, 5, v%d" % (T3, L))
    a("v_xor_b32 v%d, v%d, v%d" % (T2, T2, T3))
    a("v_lshlrev_b32 v%d, 4, v%d" % (T2, T2))
    a("v_lshl_add_u32 v%d, v%d, 7, v%d" % (T1, T1, T2))
    a("s_mul_i32 s50, s3, 12288")
    a("s_add_u32 s50, s50, %d" % XBASE)
    for k in range(4):
        a("v_xor_b32 v%d, %d, v%d" % (T2, 32 * k, T1))
        a("v_add_u32 v%d, s50, v%d" % (VXR + k, T2))
    a("v_lshrrev_b32 v%d, 5, v%d" % (T1, L))
    a("v_lshlrev_b32 v%d, 10, v%d" % (T1, T1))
    a("v_bfe_u32 v%d, v%d, 2, 2" % (T2, L))
    a("v_lshl_add_u32 v%d, v%d, 7, v%d" % (T1, T2, T1))
    a("v_bfe_u32 v%d, v%d, 4, 1" % (T3, L))
    a("v_lshl_add_u32 v%d, v%d, 5, v%d" % (T1, T3, T1))
    a("v_and_b32 v%d, 3, v%d" % (T3, L))
    a("v_lshl_add_u32 v%d, v%d, 3, v%d" % (T1, T3, T1))
    a("v_bfe_u32 v%d, v%d, 3, 1" % (T2, L))
    for nt in range(2):
        a("v_xor_b32 v%d, %d, v%d" % (T3, nt, T2))
        a("v_lshl_add_u32 v%d, v%d, 6, v%d" % (VT + nt, T3, T1))
    a("s_waitcnt lgkmcnt(0)")
    srd(a, 8, 32, 33, 2048 * 512 * 2)
    srd(a, 12, 34, 35, 2048 * 512 * 2)
    srd(a, 16, 36, 37, 512 * 4096 * 2)
    srd(a, 20, 38, 39, 512 * 4096 * 2)
    srd(a, 24, 40, 41, 512 * 4096 * 2)
    srd(a, 28, 42, 43, WS_END)
    srd(a, 56, 52, 53, 4096 * 512 * 2)
    srd(a, 60, 62, 63, 2048 * 512 * 2)
    a("s_lshl_b32 s6, s5, 3")
    a("s_add_u32 s6, s6, s3")
    a("s_mov_b32 s47, s6")
    a("s_lshl_b32 s6, s6, 15")
    a("s_lshl_b32 s7, s3, 17")
    a("s_lshl_b32 s46, s4, 8")
    a("s_add_u32 s7, s7, s46")
    a("s_lshl_b32 s44, s3, 11")
    a("s_lshl_b32 s45, s4, 6")
    a("s_add_u32 s45, s45, s47")
    a("s_lshl_b32 s45, s45, 13")
    a("s_lshr_b32 s48, s47, 1")
    a("s_lshl_b32 s46, s4, 5")
    a("s_add_u32 s48, s48, s46")
    a("s_lshl_b32 s48, s48, 14")
    a("s_and_b32 s46, s3, 1")
    a("s_lshl_b32 s46, s46, 11")
    a("s_add_u32 s48, s48, s46")
    a("s_add_u32 s48, s48, 0x%x" % WS_V)
    a("s_mov_b32 s49, 0x%08x" % f32bits((128 ** -0.5) * math.log2(math.e)))
    a("s_mov_b32 s54, 0x%08x" % f32bits(2.0 ** VSC))

    def dostamp(i):
        if not stamp: return
        a("s_memtime s[64:65]")
        a("s_waitcnt lgkmcnt(0)")
        a.lg = []
        a("v_writelane_b32 v235, s64, %d" % i)
    ORDER = [(2, 0), (3, 0), (2, 1), (3, 1), (2, 2), (3, 2), (2, 3), (3, 3)] + [(hp, c) for hp in (4, 5, 0, 1) for c in range(4)]
    XS = {-1: [8, 9], 0: [10], 1: [11], 2: [12], 3: [13], 4: [14], 5: [15], 12: [0, 1], 13: [2, 3], 14: [4, 5], 15: [6, 7]}
    XORD = [n for k in sorted(XS) for n in XS[k]]
    XPOS = {n: i for i, n in enumerate(XORD)}

    def dma(gc):
        if nodma: return
        hp, c = ORDER[gc]
        mat, nh = hp // 2, hp % 2
        slot = gc % NS
        for i in range(2):
            a("s_add_u32 s46, s7, 0x%x" % ((128 * c + 8 * i) * 8192 + nh * 128))
            a("s_add_u32 m0, s44, 0x%x" % (slot * 16384 + i * 1024))
            a.vmem("buffer_load_dwordx4 v%d, s[%d:%d], s46 offen lds" % (VW, 16 + 4 * mat, 19 + 4 * mat), ("w", gc))

    def xdma(n):
        if nox: return
        which, i = n // 8, n % 8
        slot = XPOS[n] % 3
        for ip in range(4):
            a("s_add_u32 s46, s6, 0x%x" % (ip * 8192 + i * 128))
            a("s_add_u32 m0, s50, 0x%x" % (slot * 4096 + ip * 1024))
            a.vmem("buffer_load_dwordx4 v%d, s[%d:%d], s46 offen lds" % (VXD2 if ip & 1 else VXD, 8 + 4 * which, 11 + 4 * which), ("x", n))

    def xread(n):
        if nox: return
        i = n % 8
        slot = XPOS[n] % 3
        a.wait_vm(("x", n))
        for k in range(4):
            a.lds("ds_read_b128 %s, v%d offset:%d" % (v(XF + 4 * (4 * i + k), 4), VXR + k, slot * 4096), ("xr", n))
        if XPOS[n] + 3 < 16:
            a.wait_lg(("xr", n))
            xdma(XORD[XPOS[n] + 3])

    NF = 24 * 16

    def fread(f):
        if notr: return
        gc, r = f // 16, f % 16
        nt, ks = r // 8, r % 8
        slot = gc % NS
        reg = WF + 4 * (f % NR)
        for e in range(2):
            a.lds("ds_read_b64_tr_b16 %s, v%d offset:%d" % (v(reg + 2 * e, 2), VT + nt, slot * 16384 + (16 * ks + 4 * e) * 128), ("f", f))

    def pack(hp, nt2):
        mat = hp // 2
        acc = ACC + 32 * (hp % 2) + 16 * nt2
        if mat == 0:
            for i in range(16):
                a("v_mul_f32 v%d, s49, v%d" % (acc + i, acc + i))
        if mat == 2 and VSC:
            for i in range(16):
                a("v_mul_f32 v%d, s54, v%d" % (acc + i, acc + i))
        for g in range(2):
            for i in range(4):
                a("v_cvt_pk_bf16_f32 v%d, v%d, v%d" % (acc + 8 * g + i, acc + 8 * g + 2 * i, acc + 8 * g + 2 * i + 1))

    def store(hp, nt2, g):
        if nost: return
        mat, nh = hp // 2, hp % 2
        nt = 2 * nh + nt2
        pk = ACC + 32 * (hp % 2) + 16 * nt2 + 8 * g
        if mat < 2:
            ks = 2 * nt + g
            base = (WS_Q if mat == 0 else WS_K) + (ks // 4) * 4096
            a("s_add_u32 s46, s45, 0x%x" % base)
            a.vmem("buffer_store_dwordx4 %s, v%d, s[28:31], s46 offen offset:%d %s" % (v(pk, 4), VL16, (ks % 4) * 1024, stf), "st")
        else:
            a("s_add_u32 s46, s48, 0x%x" % (nt * 4096))
            a.vmem("buffer_store_dwordx4 %s, v%d, s[28:31], s46 offen offset:%d %s" % (v(pk, 4), VL16, g * 1024, stf), "st")

    dostamp(0)
    dma(0)
    xdma(XORD[0]); xdma(XORD[1])
    dma(1)
    xdma(XORD[2])
    dma(2)
    pfq = []
    if pref:
        a("s_lshl_b32 s55, s2, 3")
        a("s_add_u32 s55, s55, s3")
        a("s_lshl_b32 s66, s55, 10")
        a("s_lshl_b32 s55, s55, 11")
        for sr in (24, -1, 16, 56):
            if sr < 0:
                pfq.append("buffer_load_dwordx4 v[252:255], v%d, s[8:11], s66 offen" % VL16)
                continue
            for i in range(2):
                pfq.append("buffer_load_dwordx4 v[252:255], v%d, s[%d:%d], s55 offen offset:%d" % (VL16, sr, sr + 3, 1024 * i))
        pfq.append("buffer_load_dwordx4 v[252:255], v%d, s[60:63], s66 offen" % VL16)
        pfq = pfq[PFSKIP:]
    xsched = XS
    for n in xsched[-1]: xread(n)
    pend_pack = []
    pend_store = []
    for gc in range(24):
        hp, c = ORDER[gc]
        mat = hp // 2
        if gc == 0:
            a.wait_vm(("w", 0))
        if gc + 1 < 24:
            a.wait_vm(("w", gc + 1))
        a("s_barrier")
        dostamp(gc + 1)
        if gc + 3 < 24:
            dma(gc + 3)
        for _ in range(PFN if gc >= PFS else 0):
            if pfq: a.vmem(pfq.pop(0), "pf")
        if c == 0 and gc >= 8:
            for p in [p for p in pend_pack if p[0] % 2 == hp % 2]:
                pend_pack.remove(p); pack(*p); pend_store += [(p[0], p[1], 0), (p[0], p[1], 1)]
            for p in [p for p in pend_store if p[0] % 2 == hp % 2]:
                pend_store.remove(p); store(*p)
        elif pend_store:
            for _ in range(2 if (c == 3 or gc == 7) else 1):
                if pend_store: store(*pend_store.pop(0))
        if gc == 0:
            for f in range(D): fread(f)
        for nt in range(2):
            for ks in range(8):
                f = gc * 16 + nt * 8 + ks
                if f + D < NF: fread(f + D)
                a.wait_lg(("f", f))
                if nt == 0 and ks % 4 == 0:
                    a.wait_lg(("xr", (8 if mat > 0 else 0) + 2 * c + ks // 4))
                acc = v(ACC + 32 * (hp % 2) + 16 * nt, 16)
                wf = v(WF + 4 * (f % NR), 4)
                xf = v(XF + 4 * (8 * c + ks), 4)
                cc = "0" if (c == 0 and ks == 0) else acc
                if mat < 2:
                    a("v_mfma_f32_32x32x16_bf16 %s, %s, %s, %s" % (acc, wf, xf, cc))
                else:
                    a("v_mfma_f32_32x32x16_bf16 %s, %s, %s, %s" % (acc, xf, wf, cc))
                if ks == 3 and pend_pack:
                    p = pend_pack.pop(0)
                    pack(*p)
                    pend_store += [(p[0], p[1], 0), (p[0], p[1], 1)]
            if c == 3:
                pend_pack.append((hp, nt))
        for n in xsched.get(gc, []): xread(n)
        if gc == 16:
            WO = VTMP + 6
            a("v_lshrrev_b32 v%d, 13, v%d" % (WO, VW))
            a("v_and_b32 v%d, 0x7f, v%d" % (WO + 1, VW))
            a("v_lshl_add_u32 v%d, v%d, 10, v%d" % (WO, WO, WO + 1))
            a("s_lshl_b32 s51, s2, 14")
            a("s_lshl_b32 s46, s3, 7")
            a("s_add_u32 s51, s51, s46")
            for i in range(2):
                a("s_add_u32 s46, s51, %d" % (i * 8192))
                a("s_add_u32 m0, s50, %d" % (i * 1024))
                a.vmem("buffer_load_dwordx4 v%d, s[56:59], s46 offen lds" % WO, "wo")
        if gc == 17:
            UO = VTMP + 5
            a("v_lshrrev_b32 v%d, 7, v%d" % (UO, VL16))
            a("v_and_b32 v%d, 0x70, v%d" % (VTMP + 7, VL16))
            a("v_lshl_add_u32 v%d, v%d, 10, v%d" % (UO, UO, VTMP + 7))
            a("s_lshr_b32 s51, s2, 3")
            a("s_lshl_b32 s51, s51, 16")
            a("s_lshl_b32 s46, s3, 13")
            a("s_add_u32 s51, s51, s46")
            a("s_and_b32 s46, s2, 7")
            a("s_lshl_b32 s46, s46, 7")
            a("s_add_u32 s51, s51, s46")
            a("s_add_u32 m0, s50, 4096")
            a.vmem("buffer_load_dwordx4 v%d, s[60:63], s51 offen lds" % UO, "ut")
        if gc == 19:
            a.wait_vm("ut")
        if gc == 21:
            UO = VTMP + 5
            a("v_bfe_u32 v%d, v%d, 5, 3" % (UO, VL16))
            a("v_mul_u32_u24 v%d, 12288, v%d" % (UO, UO))
            a("v_bfe_u32 v%d, v%d, 4, 1" % (VTMP + 7, VL16))
            a("v_lshl_add_u32 v%d, v%d, 9, v%d" % (UO, VTMP + 7, UO))
            a("v_lshrrev_b32 v%d, 8, v%d" % (VTMP + 7, VL16))
            a("v_lshl_add_u32 v%d, v%d, 2, v%d" % (UO, VTMP + 7, UO))
            a("s_lshl_b32 s46, s3, 4")
            a("s_add_u32 s46, s46, %d" % (XBASE + 4096))
            a("v_add_u32 v%d, s46, v%d" % (UO, UO))
            for i in range(4):
                a.lds("ds_read_b32 v%d, v%d offset:%d" % (VTMP + 8 + i, UO, 128 * i), "utr")
            a("v_lshlrev_b32 v%d, 13, v%d" % (VTMP + 7, VTMP + 7))
            a("v_and_b32 v%d, 0xf0, v%d" % (UO, VL16))
            a("v_add_u32 v%d, v%d, v%d" % (UO, UO, VTMP + 7))
            a("s_and_b32 s51, s2, 7")
            a("s_lshl_b32 s51, s51, 18")
            a("s_lshl_b32 s46, s3, 15")
            a("s_add_u32 s51, s51, s46")
            a("s_lshr_b32 s46, s2, 3")
            a("s_lshl_b32 s46, s46, 8")
            a("s_add_u32 s51, s51, s46")
            a("s_add_u32 s51, s51, 0x%x" % WS_UT)
            a.wait_lg("utr")
            a.vmem("buffer_store_dwordx4 %s, v%d, s[28:31], s51 offen %s" % (v(VTMP + 8, 4), UO, stf), "st")
        if gc == 20:
            WO = VTMP + 6
            a("v_lshrrev_b32 v%d, 9, v%d" % (WO, VL16))
            a("v_lshlrev_b32 v%d, 9, v%d" % (WO, WO))
            a("v_subrev_u32 v%d, s50, v%d" % (WO, WO))
            a("v_sub_u32 v%d, v%d, v%d" % (WO + 1, VT + 1, WO))
            a("v_sub_u32 v%d, v%d, v%d" % (WO, VT, WO))
            a.wait_vm("wo")
            for mt2 in range(2):
                for e in range(2):
                    a.lds("ds_read_b64_tr_b16 %s, v%d offset:%d" % (v(VTMP + 8 + 4 * mt2 + 2 * e, 2), WO + mt2, 8 * e * 128), "wor")
            a.wait_lg("wor")
            a("s_lshl_b32 s51, s3, 19")
            a("s_lshl_b32 s46, s2, 10")
            a("s_add_u32 s51, s51, s46")
            a("s_add_u32 s51, s51, 0x%x" % WS_WO)
            for mt2 in range(2):
                a("s_add_u32 s46, s51, 0x%x" % (mt2 << 18))
                a.vmem("buffer_store_dwordx4 %s, v%d, s[28:31], s46 offen %s" % (v(VTMP + 8 + 4 * mt2, 4), VL16, stf), "st")
    while pend_pack:
        p = pend_pack.pop(0)
        pack(*p)
        pend_store += [(p[0], p[1], 0), (p[0], p[1], 1)]
    while pend_store:
        store(*pend_store.pop(0))
    if stamp:
        dostamp(25)
        a("s_waitcnt vmcnt(0)")
        dostamp(26)
        a("s_lshl_b32 s46, s2, 3")
        a("s_add_u32 s46, s46, s3")
        a("s_lshl_b32 s46, s46, 8")
        a("s_add_u32 s46, s46, 0x%x" % (60 << 20))
        a("v_lshrrev_b32 v251, 2, v%d" % VL16)
        a("buffer_store_dword v235, v251, s[28:31], s46 offen")
    a.label("L_k1_end")
    a("s_endpgm")
    return a.lines
```

```python
from asmlib import *
from k1 import srd, f32bits, WS_Q, WS_K, WS_V, WS_C
import math

K2_LDS = 163840
BIAS = 0.0
VSC = 0


def gen_k2(name, stf="sc1"):
    a = Asm()
    Q, O, S, P, NEGM, SAVE, FR, E = 0, 32, 96, 128, 144, 160, 192, 224
    KA, VA, L16, MU, LS = 232, 233, 234, 235, 236
    SA, SB = 238, 240
    THR, T1, T2, NINF, SCR, T3, T4, T5, STA = 242, 243, 244, 245, 246, 247, 248, 249, 250
    NR, D = 8, 6
    a.label(name)
    a("s_cmp_ge_u32 s2, 256")
    a("s_cbranch_scc1 L_k2_end")
    a("s_load_dwordx2 s[42:43], s[0:1], 136")
    a("v_lshrrev_b32 v%d, 6, v0" % T1)
    a("v_readfirstlane_b32 s3, v%d" % T1)
    a("v_and_b32 v%d, 63, v0" % T1)
    a("v_lshlrev_b32 v%d, 4, v%d" % (L16, T1))
    a("s_and_b32 s4, s2, 7")
    a("s_lshl_b32 s4, s4, 2")
    a("s_lshr_b32 s5, s2, 3")
    a("s_and_b32 s5, s5, 3")
    a("s_add_u32 s4, s4, s5")
    a("s_lshr_b32 s5, s2, 5")
    a("s_lshr_b32 s6, s3, 2")
    a("s_and_b32 s7, s3, 3")
    a("s_sub_u32 s12, 16, s5")
    a("s_cmp_eq_u32 s3, 4")
    a("s_cselect_b32 s40, 1, 0")
    a("s_cmp_eq_u32 s3, 5")
    a("s_cselect_b32 s40, 1, s40")
    a("v_and_b32 v%d, 31, v%d" % (THR, T1))
    a("v_lshrrev_b32 v%d, 5, v%d" % (T2, T1))
    a("v_lshlrev_b32 v%d, 2, v%d" % (T2, T2))
    a("v_sub_u32 v%d, v%d, v%d" % (THR, THR, T2))
    a("s_lshl_b32 s23, s7, 5")
    a("s_lshl_b32 s24, s6, 6")
    a("s_sub_u32 s23, s23, s24")
    a("v_add_u32 v%d, s23, v%d" % (THR, THR))
    a("v_mov_b32 v%d, 0xff800000" % NINF)
    a("s_lshl_b32 s23, s6, 16")
    a("v_add_u32 v%d, s23, v%d" % (KA, L16))
    a("v_add_u32 v%d, 0x8000, v%d" % (VA, KA))
    a("v_xor_b32 v%d, 0x4000, v%d" % (VA, VA))
    a("s_lshl_b32 s24, s7, 12")
    a("s_add_u32 s20, s23, s24")
    a("s_add_u32 s21, s20, 0x8000")
    a("s_lshl_b32 s24, s7, 13")
    a("s_add_u32 s24, s24, 0x20000")
    a("v_add_u32 v%d, s24, v%d" % (SCR, L16))
    a("s_lshl_b32 s18, s4, 19")
    a("s_lshl_b32 s23, s6, 14")
    a("s_add_u32 s18, s18, s23")
    a("s_lshl_b32 s23, s7, 12")
    a("s_add_u32 s18, s18, s23")
    a("s_add_u32 s19, s18, 0x%x" % WS_V)
    a("s_add_u32 s18, s18, 0x%x" % WS_K)
    a("s_mov_b32 s26, 0x%08x" % f32bits(2.0 ** (50 - BIAS)))
    a("s_mov_b32 s27, 0x%08x" % f32bits(BIAS))
    a("s_mov_b32 s38, 0x%08x" % f32bits(-BIAS))
    a("s_mov_b32 s39, 0x%08x" % f32bits(2.0 ** (-VSC)))
    a("s_waitcnt lgkmcnt(0)")
    srd(a, 8, 42, 43, 64 << 20)

    def dma_tile(seqreg_expr_add, is_v):
        a("s_add_u32 s23, s14, %d" % seqreg_expr_add)
        a("s_min_u32 s23, s23, 16")
        a("s_and_b32 s36, s23, 1")
        a("s_lshl_b32 s36, s36, 14")
        a("s_add_u32 m0, s36, s%d" % (21 if is_v else 20))
        a("s_cmp_ge_u32 s23, s12")
        a("s_cselect_b32 s24, s12, 0")
        a("s_sub_u32 s23, s23, s24")
        a("s_lshl_b32 s23, s23, 15")
        a("s_add_u32 s23, s23, s%d" % (19 if is_v else 18))
        for i in range(4):
            a("buffer_load_dwordx4 v%d, s[8:11], s23 offen offset:%d lds" % (L16, 1024 * i))

    def qload():
        a("s_lshl_b32 s23, s4, 6")
        a("s_lshl_b32 s24, s17, 2")
        a("s_add_u32 s23, s23, s24")
        a("s_add_u32 s23, s23, s7")
        a("s_lshl_b32 s23, s23, 13")
        a("s_add_u32 s24, s23, 4096")
        for ks in range(8):
            a("buffer_load_dwordx4 %s, v%d, s[8:11], s%d offen offset:%d" % (v(Q + 4 * ks, 4), L16, 23 if ks < 4 else 24, (ks % 4) * 1024))

    a("s_mov_b32 s14, 0")
    a("s_sub_u32 s17, 15, s5")
    a("s_mov_b32 s25, 0")

    def dma_tile2(add, is_v):
        a("s_add_u32 s23, s14, %d" % add)
        a("s_and_b32 s36, s23, 1")
        a("s_lshl_b32 s36, s36, 14")
        a("s_add_u32 m0, s36, s%d" % (21 if is_v else 20))
        a("s_min_u32 s23, s23, 16")
        a("s_cmp_ge_u32 s23, s12")
        a("s_cselect_b32 s24, s12, 0")
        a("s_sub_u32 s23, s23, s24")
        a("s_lshl_b32 s23, s23, 15")
        a("s_add_u32 s23, s23, s%d" % (19 if is_v else 18))
        for i in range(4):
            a("buffer_load_dwordx4 v%d, s[8:11], s23 offen offset:%d lds" % (L16, 1024 * i))

    dma_tile2(0, False)
    qload()
    dma_tile2(1, False)
    dma_tile2(0, True)
    a("s_waitcnt vmcnt(8)")

    fcnt = [0]

    def kread(i):
        a.lds("ds_read_b128 %s, v%d offset:%d" % (v(FR + 4 * (fcnt[0] % NR), 4), KA, i * 1024), ("f", fcnt[0])); fcnt[0] += 1

    def vread(i):
        a.lds("ds_read_b128 %s, v%d offset:%d" % (v(FR + 4 * (fcnt[0] % NR), 4), VA, i * 1024), ("f", fcnt[0])); fcnt[0] += 1

    def mphase(qk, pv, prefetched):
        seq = []
        if qk: seq += [("k", i) for i in range(16)]
        if pv: seq += [("v", i) for i in range(16)]
        fcnt[0] = prefetched
        if prefetched:
            a.lg = [("f", i) for i in range(prefetched)]
        issued = prefetched
        def issue():
            nonlocal issued
            if issued < len(seq):
                kind, i = seq[issued]
                (kread if kind == "k" else vread)(i)
                issued += 1
        while issued < min(D, len(seq)): issue()
        for n, (kind, i) in enumerate(seq):
            issue()
            a.wait_lg(("f", n))
            fr = v(FR + 4 * (n % NR), 4)
            if kind == "k":
                st, ks = i // 8, i % 8
                acc = v(S + 16 * st, 16)
                cc = v(NEGM, 16) if ks == 0 else acc
                a("v_mfma_f32_32x32x16_bf16 %s, %s, %s, %s" % (acc, fr, v(Q + 4 * ks, 4), cc))
            else:
                dt, k16 = i // 4, i % 4
                acc = v(O + 16 * dt, 16)
                a("v_mfma_f32_32x32x16_bf16 %s, %s, %s, %s" % (acc, fr, v(P + 4 * k16, 4), acc))

    def kprefetch():
        fcnt[0] = 0
        a.lg = []
        for i in range(D): kread(i)

    a.label("L_k2_qblock")
    a("s_add_u32 s16, s17, 1")
    a("s_mov_b32 s15, 0")
    for i in range(64): a("v_mov_b32 v%d, 0" % (O + i))
    for i in range(16): a("v_mov_b32 v%d, s38" % (NEGM + i))
    a("v_mov_b32 v%d, 0" % MU)
    a("v_mov_b32 v%d, 0" % LS)
    a("s_barrier")
    kprefetch()
    a("s_cmp_eq_u32 s6, 0")
    a("s_cbranch_scc1 L_k2_m0")
    a("s_barrier")
    a.label("L_k2_m0")
    a("s_add_u32 s41, s15, s40")
    a("s_cmp_eq_u32 s41, s16")
    a("s_cbranch_scc1 L_k2_mskip")
    mphase(True, False, D)
    a("s_branch L_k2_mdone")
    a.label("L_k2_mskip")
    a("s_waitcnt lgkmcnt(0)")
    a("s_branch L_k2_mdone")
    a.label("L_k2_pvonly")
    a("s_waitcnt lgkmcnt(0)")
    a.lg = []
    mphase(False, True, 0)
    a("s_branch L_k2_mdone")
    a.label("L_k2_loop")
    a("s_barrier")
    a("s_add_u32 s41, s15, s40")
    a("s_cmp_eq_u32 s41, s16")
    a("s_cbranch_scc1 L_k2_pvonly")
    mphase(True, True, D)
    a.label("L_k2_mdone")
    a("v_xor_b32 v%d, 0x4000, v%d" % (KA, KA))
    a("v_xor_b32 v%d, 0x4000, v%d" % (VA, VA))
    a("s_waitcnt vmcnt(4)")
    a("s_barrier")
    def dma_prep(add, is_v, so, sm):
        a("s_add_u32 s23, s14, %d" % add)
        a("s_and_b32 s36, s23, 1")
        a("s_lshl_b32 s36, s36, 14")
        a("s_add_u32 s%d, s36, s%d" % (sm, 21 if is_v else 20))
        a("s_min_u32 s23, s23, 16")
        a("s_cmp_ge_u32 s23, s12")
        a("s_cselect_b32 s24, s12, 0")
        a("s_sub_u32 s23, s23, s24")
        a("s_lshl_b32 s23, s23, 15")
        a("s_add_u32 s%d, s23, s%d" % (so, 19 if is_v else 18))
    dma_prep(2, False, 44, 45)
    dma_prep(1, True, 46, 47)

    def dma_one(i):
        if i % 4 == 0: a("s_mov_b32 m0, s%d" % (45 if i < 4 else 47))
        a("buffer_load_dwordx4 v%d, s[8:11], s%d offen offset:%d lds" % (L16, 44 if i < 4 else 46, 1024 * (i % 4)))
    a("s_add_u32 s15, s15, 1")
    a("s_cmp_lg_u32 s15, s16")
    a("s_cbranch_scc1 L_k2_nomask")
    a("s_cmp_eq_u32 s40, 1")
    a("s_cbranch_scc1 L_k2_sskip")
    for r0 in range(0, 32, 4):
        for q in range(4):
            r = r0 + q
            st, jj, ii = r // 16, (r % 16) // 4, r % 4
            e = 32 * st + 8 * jj + ii
            a("v_cmp_lt_i32_e64 s[%d:%d], v%d, %d" % (28 + 2 * q, 29 + 2 * q, THR, e))
        for q in range(4):
            r = r0 + q
            a("v_cndmask_b32_e64 v%d, v%d, v%d, s[%d:%d]" % (S + r, S + r, NINF, 28 + 2 * q, 29 + 2 * q))
    a.label("L_k2_nomask")
    a("s_mov_b32 s22, 0xf149f2ca")
    a("s_cmp_eq_u32 s15, 1")
    a("s_cbranch_scc1 L_k2_rare")
    def expblock(with_dma):
        for p in range(16):
            e = E + 2 * (p % 4)
            a("v_exp_f32 v%d, v%d" % (e, S + 2 * p))
            a("v_exp_f32 v%d, v%d" % (e + 1, S + 2 * p + 1))
            if with_dma and p % 2 == 0: dma_one(p // 2)
            if p >= 1:
                pe = E + 2 * ((p - 1) % 4)
                a("v_cvt_pk_bf16_f32 v%d, v%d, v%d" % (P + p - 1, pe, pe + 1))
                if p - 1 < 2:
                    a("v_add_f32 v%d, v%d, v%d" % (SA + (p - 1), pe, pe + 1))
                else:
                    a("v_add_f32 v%d, v%d, v%d" % (SA, SA, pe))
                    a("v_add_f32 v%d, v%d, v%d" % (SA + 1, SA + 1, pe + 1))
        pe = E + 2 * (15 % 4)
        a("v_cvt_pk_bf16_f32 v%d, v%d, v%d" % (P + 15, pe, pe + 1))
        a("v_add_f32 v%d, v%d, v%d" % (SA, SA, pe))
        a("v_add_f32 v%d, v%d, v%d" % (SA + 1, SA + 1, pe + 1))
        a("v_add_f32 v%d, v%d, v%d" % (T1, SA, SA + 1))

    a.label("L_k2_exp")
    expblock(True)
    a("v_cmp_lt_f32 vcc, s26, v%d" % T1)
    a("s_mov_b32 s22, 0")
    a("s_cbranch_vccnz L_k2_rare")
    a.label("L_k2_expdone")
    a("v_add_f32 v%d, v%d, v%d" % (LS, LS, T1))
    a("s_add_u32 s14, s14, 1")
    a("s_cmp_eq_u32 s15, s16")
    a("s_cbranch_scc1 L_k2_last")
    kprefetch()
    a("s_waitcnt vmcnt(8)")
    a("s_branch L_k2_loop")
    a.label("L_k2_rare")
    a("v_max3_f32 v%d, v%d, v%d, v%d" % (T1, S, S + 1, S + 2))
    a("v_max3_f32 v%d, v%d, v%d, v%d" % (T2, S + 3, S + 4, S + 5))
    for i in range(6, 30, 4):
        a("v_max3_f32 v%d, v%d, v%d, v%d" % (T1, T1, S + i, S + i + 1))
        a("v_max3_f32 v%d, v%d, v%d, v%d" % (T2, T2, S + i + 2, S + i + 3))
    a("v_max3_f32 v%d, v%d, v%d, v%d" % (T1, T1, S + 30, S + 31))
    a("v_max_f32 v%d, v%d, v%d" % (T1, T1, T2))
    a("v_mov_b32 v%d, v%d" % (T2, T1))
    a("v_permlane32_swap_b32 v%d, v%d" % (T1, T2))
    a("v_max_f32 v%d, v%d, v%d" % (T1, T1, T2))
    a("v_add_f32 v%d, s27, v%d" % (T1, T1))
    a("v_max_f32 v%d, s22, v%d" % (T1, T1))
    a("v_max_f32 v%d, 0, v%d" % (T2, T1))
    a("v_sub_f32 v%d, 0, v%d" % (T2, T2))
    a("v_exp_f32 v%d, v%d" % (T2, T2))
    a("v_add_f32 v%d, v%d, v%d" % (MU, MU, T1))
    for i in range(32): a("v_sub_f32 v%d, v%d, v%d" % (S + i, S + i, T1))
    for i in range(16): a("v_sub_f32 v%d, s38, v%d" % (NEGM + i, MU))
    a("s_cmp_lg_u32 s22, 0")
    a("s_cbranch_scc1 L_k2_exp")
    a("v_mul_f32 v%d, v%d, v%d" % (LS, LS, T2))
    for i in range(64): a("v_mul_f32 v%d, v%d, v%d" % (O + i, O + i, T2))
    expblock(False)
    a("s_branch L_k2_expdone")
    a.label("L_k2_sskip")
    for i in range(8): dma_one(i)
    a("s_cmp_lg_u32 s16, 1")
    a("s_cbranch_scc1 L_k2_sskip2")
    a("v_mov_b32 v%d, 0xf149f2ca" % MU)
    a.label("L_k2_sskip2")
    a("s_add_u32 s14, s14, 1")
    a("s_waitcnt vmcnt(8)")
    a("s_barrier")
    a("s_branch L_k2_lastdone")
    a.label("L_k2_last")
    a("s_waitcnt vmcnt(8)")
    a("s_barrier")
    a.lg = []
    mphase(False, True, 0)
    a.label("L_k2_lastdone")
    a("v_sub_u32 v%d, v%d, v%d" % (STA, VA, L16))
    a("v_lshrrev_b32 v%d, 2, v%d" % (T1, L16))
    a("v_add_u32 v%d, v%d, v%d" % (STA, STA, T1))
    a("s_lshl_b32 s23, s7, 9")
    a("v_add_u32 v%d, s23, v%d" % (STA, STA))
    a("v_xor_b32 v%d, 0x4000, v%d" % (VA, VA))
    a("v_xor_b32 v%d, 0x4000, v%d" % (VA, VA))
    a("v_mov_b32 v%d, v%d" % (T1, LS))
    a("v_permlane32_swap_b32 v%d, v%d" % (LS, T1))
    a("v_add_f32 v%d, v%d, v%d" % (LS, LS, T1))
    a("v_xor_b32 v%d, 0x10000, v%d" % (T5, STA))
    a("s_lshl_b32 s37, s17, 2")
    a("s_add_u32 s37, s37, s7")
    a("s_lshl_b32 s37, s37, 8")
    a("s_lshl_b32 s23, s4, 3")
    a("s_add_u32 s37, s37, s23")
    a("s_lshl_b32 s37, s37, 10")
    a("s_add_u32 s37, s37, 0x%x" % WS_C)
    a("s_mov_b32 s17, s5")
    a("s_barrier")
    qload()

    def finalize(own):
        a("v_max_f32 v%d, v%d, v%d" % (T1, MU, T3))
        a("v_sub_f32 v%d, v%d, v%d" % (T2, MU, T1))
        a("v_sub_f32 v%d, v%d, v%d" % (T3, T3, T1))
        a("v_exp_f32 v%d, v%d" % (T2, T2))
        a("v_exp_f32 v%d, v%d" % (T3, T3))
        a("v_mul_f32 v%d, v%d, v%d" % (T1, T2, LS))
        a("v_fmac_f32 v%d, v%d, v%d" % (T1, T3, T4))
        a("v_rcp_f32 v%d, v%d" % (T1, T1))
        a("v_mul_f32 v%d, s39, v%d" % (T1, T1))
        a("v_mul_f32 v%d, v%d, v%d" % (T2, T2, T1))
        a("v_mul_f32 v%d, v%d, v%d" % (T3, T3, T1))
        for i in range(32):
            a("v_mul_f32 v%d, v%d, v%d" % (own + i, own + i, T2))
            a("v_fmac_f32 v%d, v%d, v%d" % (own + i, SAVE + i, T3))
        for g in range(4):
            for i in range(4):
                a("v_cvt_pk_bf16_f32 v%d, v%d, v%d" % (own + 8 * g + i, own + 8 * g + 2 * i, own + 8 * g + 2 * i + 1))
            off = ((own - O) // 8 + g) * 1024
            if off >= 4096:
                if g == 0: a("s_add_u32 s37, s37, 4096")
                off -= 4096
            a("buffer_store_dwordx4 %s, v%d, s[8:11], s37 offen offset:%d %s" % (v(own + 8 * g, 4), L16, off, stf))

    a("s_cmp_eq_u32 s6, 0")
    a("s_cbranch_scc0 L_k2_mergeB")
    a("ds_write_b32 v%d, v%d" % (STA, MU))
    a("ds_write_b32 v%d, v%d offset:256" % (STA, LS))
    for i in range(8):
        a("ds_write_b128 v%d, %s offset:%d" % (SCR, v(O + 32 + 4 * i, 4), 1024 * i))
    a("s_waitcnt lgkmcnt(0)")
    a("s_barrier")
    a("s_barrier")
    a("ds_read_b32 v%d, v%d" % (T3, T5))
    a("ds_read_b32 v%d, v%d offset:256" % (T4, T5))
    for i in range(8):
        a("ds_read_b128 %s, v%d offset:%d" % (v(SAVE + 4 * i, 4), SCR, 1024 * i))
    a("s_waitcnt lgkmcnt(0)")
    finalize(O)
    a("s_branch L_k2_next")
    a.label("L_k2_mergeB")
    a("ds_write_b32 v%d, v%d" % (STA, MU))
    a("ds_write_b32 v%d, v%d offset:256" % (STA, LS))
    a("ds_read_b32 v%d, v%d" % (T3, T5))
    a("ds_read_b32 v%d, v%d offset:256" % (T4, T5))
    for i in range(8):
        a("ds_read_b128 %s, v%d offset:%d" % (v(SAVE + 4 * i, 4), SCR, 1024 * i))
    a("s_waitcnt lgkmcnt(0)")
    for i in range(8):
        a("ds_write_b128 v%d, %s offset:%d" % (SCR, v(O + 4 * i, 4), 1024 * i))
    a("s_waitcnt lgkmcnt(0)")
    a("s_barrier")
    finalize(O + 32)
    a.label("L_k2_next")
    a("s_add_u32 s25, s25, 1")
    a("s_cmp_eq_u32 s25, 2")
    a("s_cbranch_scc1 L_k2_end")
    a("s_waitcnt vmcnt(4)")
    a("s_branch L_k2_qblock")
    a.label("L_k2_end")
    a("s_endpgm")
    return a.lines
```

```python
from asmlib import *
from k1 import srd, f32bits, WS_UT, WS_END
import math

CSTR = 4160
UCH = 8 * CSTR
L_KB = 0
L_R = 12288
L_PAR = L_R + CSTR + 32
L_TAB = L_PAR + 4096
YSTR = 144
YW = 64 * YSTR
L_Y = 0
K4_LDS = max(L_R + 2 * UCH + 64, 8 * YW)


def gen_ssm_body(a, wgreg="s2"):
    L, T1, T2, T3, T4 = 1, 2, 3, 4, 5
    UR = 8
    a("s_setprio 2")
    a("s_load_dwordx4 s[32:35], s[0:1], 48")
    a("s_load_dwordx4 s[36:39], s[0:1], 64")
    a("s_load_dwordx4 s[40:43], s[0:1], 80")
    a("s_load_dwordx4 s[44:47], s[0:1], 96")
    a("s_load_dwordx4 s[48:51], s[0:1], 112")
    a("s_load_dwordx2 s[52:53], s[0:1], 136")
    a("v_lshrrev_b32 v%d, 6, v0" % T1)
    a("v_readfirstlane_b32 s3, v%d" % T1)
    a("v_and_b32 v%d, 63, v0" % L)
    a("s_and_b32 s59, %s, 7" % wgreg)
    a("s_lshl_b32 s59, s59, 5")
    a("s_lshr_b32 s4, %s, 3" % wgreg)
    a("s_add_u32 s59, s59, s4")
    wgreg = "s59"
    a("s_lshl_b32 s4, %s, 2" % wgreg)
    a("s_waitcnt lgkmcnt(0)")
    a("s_load_dword s5, s[46:47], s4")
    a("s_load_dword s6, s[48:49], s4")
    srd(a, 8, 52, 53, WS_END)
    srd(a, 12, 50, 51, 2048 * 1024 * 2)
    a("v_mov_b32 v16, 0"); a("v_mov_b32 v17, 0"); a("v_mov_b32 v18, 0"); a("v_mov_b32 v19, 0")
    a("s_cmp_ge_u32 s3, 4")
    a("s_cbranch_scc1 L_ssm_nopar0")
    a("v_lshlrev_b32 v%d, 1, v0" % T2)
    a("s_lshl_b32 s7, %s, 9" % wgreg)
    srcs = [(34, 35), (36, 37), (38, 39), (40, 41), (42, 43), (44, 45)]
    for i, (lo, hi) in enumerate(srcs):
        srd(a, 16, lo, hi, 512 * 128 * 2)
        a("buffer_load_ushort v%d, v%d, s[16:19], s7 offen" % (20 + i, T2))
    a.label("L_ssm_nopar0")
    a("v_lshlrev_b32 v%d, 2, v0" % T1)
    a("s_lshl_b32 s7, %s, 13" % wgreg)
    a("s_add_u32 s7, s7, 0x%x" % WS_UT)
    for r in range(4):
        if r == 2: a("s_add_u32 s7, s7, 4096")
        a("buffer_load_dword v%d, v%d, s[8:11], s7 offen offset:%d" % (UR + r, T1, (r % 2) * 2048))
    a("v_and_b32 v%d, 255, v0" % T2)
    a("v_lshrrev_b32 v%d, 8, v0" % T1)
    a("v_mul_u32_u24 v%d, 12288, v%d" % (T3, T1))
    for e in range(8):
        x = 80 + e; y = 40 + e; z = 48 + e
        a("v_lshl_add_u32 v%d, v%d, 3, %d" % (x, T2, e))
        a("v_cvt_f32_u32 v%d, v%d" % (x, x))
        a("v_cvt_pk_bf16_f32 v%d, v%d, v%d" % (x, x, x))
        a("v_lshlrev_b32 v%d, 16, v%d" % (x, x))
        a("v_cvt_u32_f32 v%d, v%d" % (y, x))
        a("v_lshrrev_b32 v%d, 23, v%d" % (x, x))
        a("v_subrev_u32 v%d, 134, v%d" % (x, x))
        a("v_med3_i32 v%d, v%d, 0, 3" % (x, x))
        a("v_lshrrev_b32 v%d, 7, v%d" % (z, y))
        a("v_lshlrev_b32 v%d, 3, v%d" % (z, z))
        a("v_and_or_b32 v%d, v%d, 7, v%d" % (z, y, z))
        a("v_lshrrev_b32 v%d, v%d, v%d" % (z, x, z))
        a("v_lshl_add_u32 v%d, v%d, 3, v%d" % (z, x, z))
        a("v_bfe_u32 v%d, v%d, 3, 4" % (y, y))
        a("v_lshl_add_u32 v%d, v%d, 4, v%d" % (z, z, y))
        a("v_lshl_add_u32 v%d, v%d, 2, v%d" % (x, z, T3))
    a("s_cmp_ge_u32 s3, 4")
    a("s_cbranch_scc0 L_ssm_par")
    a("v_subrev_u32 v%d, 256, v0" % T2)
    a("v_lshrrev_b32 v%d, 5, v%d" % (T1, T2))
    a("v_mul_u32_u24 v%d, 1536, v%d" % (T1, T1))
    a("v_and_b32 v%d, 31, v%d" % (T2, T2))
    a("v_lshl_add_u32 v%d, v%d, 4, v%d" % (T1, T2, T1))
    a("ds_write_b128 v%d, v[16:19] offset:%d" % (T1, L_KB))
    a("s_branch L_ssm_nopar")
    a.label("L_ssm_par")
    a("s_waitcnt lgkmcnt(0)")
    a("s_lshl_b32 s16, s5, 16")
    a("s_and_b32 s17, s5, 0xffff0000")
    a("s_cmp_lt_u32 s3, 2")
    a("s_cselect_b32 s16, s16, s17")
    a("v_mov_b32 v%d, 0x%08x" % (T3, f32bits(math.log2(math.e))))
    a("v_mul_f32 v%d, s16, v%d" % (T3, T3))
    a("v_exp_f32 v%d, v%d" % (T3, T3))
    a("v_cvt_pk_bf16_f32 v%d, v%d, v%d" % (T3, T3, T3))
    a("v_lshlrev_b32 v%d, 16, v%d" % (T3, T3))
    a("s_waitcnt vmcnt(4)")
    for i in range(6): a("v_lshlrev_b32 v%d, 16, v%d" % (20 + i, 20 + i))
    a("v_mul_f32 v28, v%d, v20" % T3)
    a("v_mul_f32 v28, 0x%08x, v28" % f32bits(math.log2(math.e)))
    a("v_mul_f32 v29, v%d, v21" % T3)
    a("v_mul_f32 v29, 0x%08x, v29" % f32bits(1.0 / (2 * math.pi)))
    a("v_mul_f32 v22, v%d, v22" % T3)
    a("v_mul_f32 v23, v%d, v23" % T3)
    a("v_mul_f32 v30, v24, v22")
    a("v_fma_f32 v30, -v25, v23, v30")
    a("v_mul_f32 v31, v24, v23")
    a("v_fmac_f32 v31, v25, v22")
    a("v_lshlrev_b32 v%d, 4, v0" % T1)
    a("ds_write_b128 v%d, v[28:31] offset:%d" % (T1, L_PAR))
    a.label("L_ssm_nopar")
    ACC = 64
    FB, FH, PA = 12, 13, 20
    a("v_and_b32 v%d, 15, v%d" % (T1, L))
    a("v_lshlrev_b32 v%d, 3, v%d" % (T2, T1))
    a("v_cvt_f32_u32 v%d, v%d" % (FB, T2))
    a("v_lshrrev_b32 v%d, 3, v%d" % (T2, T1))
    a("v_and_b32 v%d, 7, v%d" % (T3, T1))
    a("v_lshl_add_u32 v%d, v%d, 7, v%d" % (T2, T2, T3))
    a("v_cvt_f32_u32 v%d, v%d" % (FH, T2))
    a("v_lshl_add_u32 v%d, v%d, 1, 16" % (T2, T1))
    a("v_lshlrev_b32 v%d, 2, v%d" % (T3, T1))
    a("v_cmp_gt_u32 vcc, 8, v%d" % T1)
    a("v_cndmask_b32 v%d, v%d, v%d, vcc" % (T2, T3, T2))
    a("v_lshrrev_b32 v%d, 3, v%d" % (T3, T2))
    a("v_and_b32 v%d, 7, v%d" % (T2, T2))
    a("v_lshl_add_u32 v%d, v%d, 7, v%d" % (T2, T3, T2))
    a("v_cvt_f32_u32 v%d, v%d" % (FH + 1, T2))
    a("v_min_u32 v%d, 8, v%d" % (T2, T1))
    a("v_add_u32 v%d, 8, v%d" % (T2, T2))
    a("v_lshlrev_b32 v%d, 7, v%d" % (T2, T2))
    a("v_cvt_f32_u32 v%d, v%d" % (FH + 2, T2))
    a("v_lshrrev_b32 v%d, 4, v%d" % (T1, L))
    a("s_lshl_b32 s7, s3, 9")
    a("v_lshlrev_b32 v%d, 4, v%d" % (T1, T1))
    a("v_add_u32 v%d, s7, v%d" % (PA, T1))
    for i in range(12): a("v_mov_b32 v%d, 0" % (ACC + i))
    a("s_waitcnt lgkmcnt(0)")
    a("s_barrier")
    for t in range(8):
        a("ds_read_b128 v[%d:%d], v%d offset:%d" % (96 + 4 * t, 99 + 4 * t, PA, L_PAR + 64 * t))
    a("s_waitcnt lgkmcnt(0)")
    for t in range(8):
        pa, pb, wr, wi = 96 + 4 * t, 97 + 4 * t, 98 + 4 * t, 99 + 4 * t
        o = 32 + 8 * (t % 2)
        for q in range(4):
            f = FB if q == 0 else FH + q - 1
            x = 48 + 4 * q
            a("v_mul_f32 v%d, v%d, v%d" % (x, pa, f))
            a("v_mul_f32 v%d, v%d, v%d" % (x + 1, pb, f))
            a("v_exp_f32 v%d, v%d" % (x, x))
            a("v_fract_f32 v%d, v%d" % (x + 1, x + 1))
            a("v_cos_f32 v%d, v%d" % (x + 2, x + 1))
            a("v_sin_f32 v%d, v%d" % (x + 3, x + 1))
        a("v_mul_f32 v%d, v48, v50" % o)
        a("v_mul_f32 v%d, v48, v51" % (o + 1))
        for q in range(1, 4):
            x = 48 + 4 * q
            ar, ai = o + 2 * q, o + 2 * q + 1
            a("v_mul_f32 v%d, v%d, v%d" % (ar, wr, x + 2))
            a("v_mul_f32 v%d, v%d, v%d" % (ai, wr, x + 3))
            a("v_fma_f32 v%d, -v%d, v%d, v%d" % (ar, wi, x + 3, ar))
            a("v_fmac_f32 v%d, v%d, v%d" % (ai, wi, x + 2))
            a("v_mul_f32 v%d, v%d, v%d" % (ar, x, ar))
            a("v_mul_f32_e64 v%d, -v%d, v%d" % (ai, x, ai))
        for part in range(2):
            for q in range(1, 4):
                acc = v(ACC + 4 * (q - 1), 4)
                a("v_mfma_f32_16x16x4_f32 %s, v%d, v%d, %s" % (acc, o + 2 * q + part, o + part, acc))
    a("v_and_b32 v%d, 15, v%d" % (T1, L))
    a("v_lshrrev_b32 v%d, 4, v%d" % (T2, L))
    a("v_lshl_add_u32 v%d, v%d, 6, v%d" % (T1, T2, T1))
    a("v_lshlrev_b32 v%d, 2, v%d" % (T1, T1))
    a("s_mul_i32 s7, s3, 3072")
    a("v_add_u32 v%d, s7, v%d" % (T1, T1))
    for r in range(3):
        for i in range(4):
            a("ds_write_b32 v%d, v%d offset:%d" % (T1, ACC + 4 * r + i, L_TAB + r * 1024 + i * 64))
    a("v_and_b32 v%d, 255, v0" % T2)
    a("v_lshrrev_b32 v%d, 8, v0" % T1)
    a("s_waitcnt vmcnt(0)")
    a("v_sub_u32 v%d, 2047, v0" % T3)
    a("v_lshlrev_b32 v%d, 1, v%d" % (T3, T3))
    a("v_add_u32 v%d, %d, v%d" % (T3, L_R - 3072, T3))
    for r in range(4):
        a("ds_write_b16 v%d, v%d offset:%d" % (T3, UR + r, (3 - r) * 1024))
        a("ds_write_b16_d16_hi v%d, v%d offset:%d" % (T3, UR + r, UCH + (3 - r) * 1024))
    a("v_mul_u32_u24 v%d, %d, v%d" % (6, UCH, T1))
    a("v_lshl_add_u32 v%d, v%d, 4, v%d" % (6, T2, 6))
    a("v_add_u32 v%d, %d, v%d" % (6, L_R, 6))
    a("v_cmp_gt_u32 vcc, 4, v%d" % T2)
    a("s_and_saveexec_b64 s[16:17], vcc")
    a("s_cbranch_execz L_ssm_noext0")
    a("ds_write_b128 v6, v[16:19] offset:4096")
    a.label("L_ssm_noext0")
    a("s_mov_b64 exec, s[16:17]")
    a("s_waitcnt lgkmcnt(0)")
    a("s_barrier")
    for e in range(8):
        for w in range(4):
            a("ds_read_b32 v%d, v%d offset:%d" % (32 + 4 * e + w, 80 + e, L_TAB + w * 3072))
        if e in (2, 5): a("s_waitcnt lgkmcnt(4)")
    a("s_waitcnt lgkmcnt(0)")
    for e in range(8):
        b = 32 + 4 * e
        a("v_add_f32 v%d, v%d, v%d" % (b, b, b + 1))
        a("v_add_f32 v%d, v%d, v%d" % (b + 2, b + 2, b + 3))
        a("v_add_f32 v%d, v%d, v%d" % (b, b, b + 2))
    for i in range(4):
        a("v_cvt_pk_bf16_f32 v%d, v%d, v%d" % (64 + i, 32 + 8 * i, 36 + 8 * i))
    a("v_and_b32 v%d, 3, v%d" % (T3, T2))
    a("v_mul_u32_u24 v%d, 1536, v%d" % (T3, T3))
    a("v_mul_u32_u24 v%d, 6144, v%d" % (T4, T1))
    a("v_add_u32 v%d, v%d, v%d" % (T3, T3, T4))
    a("v_lshrrev_b32 v%d, 2, v%d" % (T4, T2))
    a("v_lshl_add_u32 v%d, v%d, 4, v%d" % (T3, T4, T3))
    a("ds_write_b128 v%d, v[64:67] offset:%d" % (T3, L_KB + 512))
    a("s_waitcnt lgkmcnt(0)")
    a("s_barrier")
    a("v_mov_b32 v%d, v6" % T4)
    a("v_cmp_gt_u32 vcc, 4, v%d" % T2)
    a("s_and_saveexec_b64 s[16:17], vcc")
    a("s_cbranch_execz L_ssm_noext")
    for sft in range(1, 8):
        a("ds_write_b128 v%d, v[16:19] offset:%d" % (T4, 4096 + sft * CSTR))
    a.label("L_ssm_noext")
    a("s_mov_b64 exec, s[16:17]")
    a("ds_read_b128 v[32:35], v%d" % T4)
    a("ds_read_b128 v[36:39], v%d offset:16" % T4)
    a("s_waitcnt lgkmcnt(0)")
    for sft in range(1, 8):
        d = 40 + 4 * (sft % 4)
        for k in range(4):
            w = 32 + sft // 2 + k
            if sft % 2 == 0:
                a("v_mov_b32 v%d, v%d" % (d + k, w))
            else:
                a("v_alignbyte_b32 v%d, v%d, v%d, 2" % (d + k, w + 1, w))
        a("ds_write_b128 v%d, %s offset:%d" % (T4, v(d, 4), sft * CSTR))
    AA, BA = 12, 13
    a("v_and_b32 v%d, 31, v%d" % (T1, L))
    a("v_lshrrev_b32 v%d, 5, v%d" % (T2, L))
    a("v_sub_u32 v%d, 7, v%d" % (T3, T1))
    a("v_and_b32 v%d, 7, v%d" % (T3, T3))
    a("v_mul_u32_u24 v%d, %d, v%d" % (AA, CSTR, T3))
    a("v_lshrrev_b32 v%d, 3, v%d" % (T3, T1))
    a("v_sub_u32 v%d, v%d, v%d" % (T3, T2, T3))
    a("v_lshl_add_u32 v%d, v%d, 4, v%d" % (AA, T3, AA))
    a("s_lshr_b32 s7, s3, 2")
    a("s_and_b32 s17, s3, 3")
    a("s_mul_i32 s16, s7, %d" % UCH)
    a("s_lshl_b32 s18, s17, 6")
    a("s_sub_u32 s16, s16, s18")
    a("s_add_u32 s16, s16, %d" % (L_R + 4080 - 256 * 15))
    a("v_add_u32 v%d, s16, v%d" % (AA, AA))
    a("v_mul_u32_u24 v%d, 1536, v%d" % (BA, T2))
    a("v_lshl_add_u32 v%d, v%d, 4, v%d" % (BA, T1, BA))
    a("s_mul_i32 s16, s7, 6144")
    a("s_lshl_b32 s18, s17, 4")
    a("s_sub_u32 s16, s16, s18")
    a("s_add_u32 s16, s16, %d" % (L_KB + 1024 - 64 * 15))
    a("v_add_u32 v%d, s16, v%d" % (BA, BA))
    a("v_subrev_u32 v%d, 512, v%d" % (BA + 1, BA))
    a("s_waitcnt lgkmcnt(0)")
    a("s_barrier")
    a.lg = []
    seq = []
    for mm in range(16):
        for ks in range(2):
            seq.append(("a", mm, ks))
            seq.append(("b", mm, ks, 1))
            if mm < 8: seq.append(("b", mm, ks, 0))
    NRG = 10; DD = 6; RB = 72
    issued = [0]

    def issue():
        if issued[0] >= len(seq): return
        it = seq[issued[0]]
        reg = RB + 4 * (issued[0] % NRG)
        mm, ks = it[1], it[2]
        if it[0] == "a":
            a.lds("ds_read_b128 %s, v%d offset:%d" % (v(reg, 4), AA, 256 * (15 - mm) + 32 * ks), ("c", issued[0]))
        else:
            a.lds("ds_read_b128 %s, v%d offset:%d" % (v(reg, 4), BA + (1 - it[3]), 64 * (15 - mm) + 3072 * ks), ("c", issued[0]))
        issued[0] += 1
    for _ in range(DD): issue()
    areg = None
    first = {0: True, 1: True}
    for n, it in enumerate(seq):
        issue()
        reg = RB + 4 * (n % NRG)
        if it[0] == "a":
            areg = reg
        else:
            a.wait_lg(("c", n))
            acc = v(32 + 16 * it[3], 16)
            a("v_mfma_f32_32x32x16_bf16 %s, %s, %s, %s" % (acc, v(areg, 4), v(reg, 4), "0" if first[it[3]] else acc))
            first[it[3]] = False
    a("s_barrier")
    a("v_mul_u32_u24 v%d, %d, v%d" % (T3, YSTR, T1))
    a("v_lshl_add_u32 v%d, v%d, 4, v%d" % (T3, T2, T3))
    a("s_mul_i32 s16, s3, %d" % YW)
    a("v_add_u32 v%d, s16, v%d" % (T3, T3))
    for nt in range(2):
        for j in range(4):
            a("ds_write_b128 v%d, %s offset:%d" % (T3, v(32 + 16 * nt + 4 * j, 4), nt * 32 * YSTR + j * 32))
    a("s_waitcnt lgkmcnt(0)")
    a("s_barrier")
    a("v_lshrrev_b32 v%d, 5, v0" % T1)
    a("v_mul_u32_u24 v%d, %d, v%d" % (T1, YSTR, T1))
    a("v_and_b32 v%d, 31, v0" % T2)
    a("v_lshl_add_u32 v%d, v%d, 2, v%d" % (T1, T2, T1))
    a("v_add_u32 v%d, %d, v%d" % (T2, 4 * YW, T1))
    for r in range(4):
        for ch in range(2):
            for w in range(4):
                a("ds_read_b32 v%d, v%d offset:%d" % (32 + 8 * r + 4 * ch + w, T1 if ch == 0 else T2, w * YW + r * 16 * YSTR))
        a("s_waitcnt lgkmcnt(4)")
    a("s_lshl_b32 s16, s6, 16")
    a("s_and_b32 s17, s6, 0xffff0000")
    a("v_lshlrev_b32 v%d, 11, v0" % T1)
    a("s_waitcnt lgkmcnt(0)")
    for r in range(4):
        y = 32 + 8 * r
        for ch in range(2):
            b = y + 4 * ch
            a("v_add_f32 v%d, v%d, v%d" % (b, b, b + 1))
            a("v_add_f32 v%d, v%d, v%d" % (b + 2, b + 2, b + 3))
            a("v_add_f32 v%d, v%d, v%d" % (b, b, b + 2))
        a("v_cvt_pk_bf16_f32 v%d, v%d, v%d" % (y, y, y + 4))
        a("v_lshlrev_b32 v64, 16, v%d" % (UR + r))
        a("v_and_b32 v65, 0xffff0000, v%d" % (UR + r))
        a("v_mul_f32 v64, s16, v64")
        a("v_mul_f32 v65, s17, v65")
        a("v_cvt_pk_bf16_f32 v64, v64, v65")
        a("v_lshlrev_b32 v66, 16, v%d" % y)
        a("v_and_b32 v67, 0xffff0000, v%d" % y)
        a("v_lshlrev_b32 v65, 16, v64")
        a("v_and_b32 v64, 0xffff0000, v64")
        a("v_add_f32 v66, v66, v65")
        a("v_add_f32 v67, v67, v64")
        a("v_cvt_pk_bf16_f32 v%d, v66, v67" % (68 + r))
        a("s_add_u32 s18, s4, 0x%x" % (r * 512 * 2048 + 1024))
        a("buffer_store_dword v%d, v%d, s[12:15], s18 offen" % (68 + r, T1))


def gen_k4(name):
    a = Asm()
    a.label(name)
    a("s_cmp_ge_u32 s2, 256")
    a("s_cbranch_scc1 L_k4_end")
    gen_ssm_body(a)
    a.label("L_k4_end")
    a("s_endpgm")
    return a.lines
```
